```python
import torch

def _softmax(x, axis=-1):
    return torch.softmax(x, dim=axis)
def _gelu(x):
    return torch.nn.functional.gelu(x, approximate="tanh")
def _silu(x):
    return torch.nn.functional.silu(x)
def _sigmoid(x):
    return torch.sigmoid(x)
def _layernorm(x, axis=-1, eps=1e-5):
    m = x.mean(dim=axis, keepdim=True)
    v = x.var(dim=axis, keepdim=True, unbiased=False)
    return (x - m) / torch.sqrt(v + eps)
def _scatter_add(tgt, idx, src, axis=0):
    return tgt.clone().index_add_(axis, idx, src)
def _segment_sum(src, seg, n):
    out = torch.zeros((n,) + src.shape[1:], dtype=src.dtype)
    return out.index_add_(0, seg, src)
def _pad(x, pw):
    flat = tuple(v for pair in reversed(pw) for v in pair)
    return torch.nn.functional.pad(x, flat)

kernel_name = 'recurrent_scan__sliding_block__swiglu_ffn__prompt'

def setup_inputs():

    _w = (lambda a: (lambda t: t.to(torch.bfloat16) if t.is_floating_point() else t)(torch.as_tensor(a)))
    def _A_setup():
        B, S, D = 1, 2048, 640
        return {
            "x": _w((lambda *s: torch.randn(*s, dtype=torch.bfloat16) * 0.05)(B, S, D)),
            "wqkv": _w((lambda *s: torch.randn(*s, dtype=torch.bfloat16) * 0.05)(D, 3 * D)),
            "wo": _w((lambda *s: torch.randn(*s, dtype=torch.bfloat16) * 0.05)(D, D)),
        }
    _A_in = _A_setup()

    def _B_setup():
        B, S, D, F = 1, 2048, 640, 1536
        return {
            "x": _w((lambda *s: torch.randn(*s, dtype=torch.bfloat16) * 0.05)(B, S, D)),
            "w_gate": _w((lambda *s: torch.randn(*s, dtype=torch.bfloat16) * 0.05)(D, F)),
            "w_up": _w((lambda *s: torch.randn(*s, dtype=torch.bfloat16) * 0.05)(D, F)),
            "w_down": _w((lambda *s: torch.randn(*s, dtype=torch.bfloat16) * 0.05)(F, D)),
        }
    _B_in = _B_setup()

    return {
        "A_x": _A_in["x"],
        "A_wqkv": _A_in["wqkv"],
        "A_wo": _A_in["wo"],
        "B_x": _B_in["x"],
        "B_w_gate": _B_in["w_gate"],
        "B_w_up": _B_in["w_up"],
        "B_w_down": _B_in["w_down"],
    }

def reference(A_x, A_wqkv, A_wo, B_x, B_w_gate, B_w_up, B_w_down):
    def _A_ref(x, wqkv, wo):
        B, S, D = x.shape
        H = 32; Dh = D // H; W = 256
        qkv = (lambda x, *d: x.permute(*d))((x @ wqkv).reshape(B, S, 3, H, Dh), 2, 0, 3, 1, 4)
        q, k, v = qkv[0], qkv[1], qkv[2]
        scores = torch.einsum("bhqd,bhkd->bhqk", q, k) * (Dh ** -0.5)
        idx = torch.arange(S)
        mask = (idx[:, None] - idx[None, :] >= 0) & (idx[:, None] - idx[None, :] < W)
        scores = torch.where(mask[None, None], scores, -1e9)
        p = _softmax(scores, axis=-1)
        o = torch.einsum("bhqk,bhkd->bhqd", p, v)
        return (lambda x, *d: x.permute(*d))(o, 0, 2, 1, 3).reshape(B, S, D) @ wo

    def _B_ref(x, w_gate, w_up, w_down):
        g = _silu(x @ w_gate)
        u = x @ w_up
        return (g * u) @ w_down

    x = A_x
    xn = _layernorm(x, axis=-1)
    s = _A_ref(xn, A_wqkv, A_wo)
    g = _silu(_B_ref(xn, B_w_gate, B_w_up, B_w_down))
    return x + s * g
```

```python
import re

REG_RE = re.compile(r'^(-?)(?:abs\()?\|?([vas])(?:(\d+)|\[(\d+):(\d+)\])\|?\)?$')
TRANS = ('v_exp_f32', 'v_log_f32', 'v_rcp_f32', 'v_rsq_f32', 'v_sqrt_f32', 'v_sin_f32', 'v_cos_f32')


def regs_of(op):
    op = op.strip()
    if op in ('vcc', 'exec', 'm0', 'scc'):
        return [op]
    if op in ('vcc_lo', 'vcc_hi'):
        return ['vcc']
    if op in ('exec_lo', 'exec_hi'):
        return ['exec']
    m = REG_RE.match(op)
    if not m:
        return []
    c = m.group(2)
    if m.group(3) is not None:
        return [c + m.group(3)]
    return [c + str(i) for i in range(int(m.group(4)), int(m.group(5)) + 1)]


class Ins:
    __slots__ = ('text', 'op', 'kind', 'rd', 'wr', 'tag', 'srcA', 'srcB', 'srcC', 'passes', 'wide', 'data', 'extra_rd', 'note')

    def __init__(self, text, tag=None, extra_rd=()):
        self.text = text
        self.tag = tag
        self.extra_rd = list(extra_rd)
        self.srcA = self.srcB = self.srcC = []
        self.passes = 0
        self.wide = False
        self.data = []
        self.note = None
        t = text.split(';')[0].strip()
        sp = t.split(None, 1)
        op = sp[0]
        self.op = op
        rest = sp[1] if len(sp) > 1 else ''
        ops, cur, d = [], '', 0
        for ch in rest:
            if ch in '[(':
                d += 1
            if ch in '])':
                d -= 1
            if ch == ',' and d == 0:
                ops.append(cur.strip()); cur = ''
            else:
                cur += ch
        if cur.strip():
            ops.append(cur.strip())
        mods = ''
        if ops:
            last = ops[-1].split()
            ops[-1] = last[0]
            mods = ' '.join(last[1:])
        R = [regs_of(o) for o in ops]
        flat = lambda l: [r for x in l for r in x]
        base = re.sub(r'_(e32|e64|sdwa|dpp)$', '', op)
        if op.startswith('v_mfma'):
            self.kind = 'mfma'
            self.wr = R[0]; self.srcA = R[1]; self.srcB = R[2]; self.srcC = R[3]
            self.rd = R[1] + R[2] + R[3]
            self.passes = 8 if '32x32' in op else 4
        elif op.startswith('ds_read') or op.startswith('ds_bpermute') or op.startswith('ds_swizzle'):
            self.kind = 'dsr'; self.wr = R[0]; self.rd = flat(R[1:])
        elif op.startswith('ds_write') or op.startswith('ds_add'):
            self.kind = 'dsw'; self.wr = []; self.rd = flat(R)
        elif op.startswith('buffer_load') and ' lds' in ' ' + mods:
            self.kind = 'dma'; self.wr = []; self.rd = flat(R) + ['m0']
        elif op.startswith('buffer_load') or op.startswith('global_load'):
            self.kind = 'vld'; self.wr = R[0]; self.rd = flat(R[1:])
        elif op.startswith('buffer_store'):
            self.kind = 'vst'; self.wr = []; self.rd = flat(R); self.data = R[0]
            self.wide = op.endswith('x4') or op.endswith('x3')
        elif op.startswith('s_load') or op in ('s_memtime', 's_memrealtime'):
            self.kind = 'smem'; self.wr = R[0]; self.rd = flat(R[1:])
        elif op in ('s_waitcnt', 's_nop', 's_barrier', 's_sleep', 's_setprio', 's_endpgm'):
            self.kind = 'misc'; self.wr = []; self.rd = []
        elif op.startswith('s_cbranch') or op == 's_branch':
            self.kind = 'br'; self.wr = []
            self.rd = ['scc'] if 'scc' in op else ['vcc'] if 'vcc' in op else ['exec'] if 'exec' in op else []
        elif op.startswith('s_cmp'):
            self.kind = 'salu'; self.wr = ['scc']; self.rd = flat(R)
        elif op.startswith('s_'):
            self.kind = 'salu'; self.wr = list(R[0]); self.rd = flat(R[1:])
            if 'saveexec' in op:
                self.wr += ['exec', 'scc']; self.rd += ['exec']
            elif not (op.startswith('s_mov') or op.startswith('s_mul') or op.startswith('s_cselect') or op.startswith('s_getpc') or op.startswith('s_getreg')):
                self.wr += ['scc']
            if op.startswith('s_cselect') or op.startswith('s_addc') or op.startswith('s_subb'):
                self.rd += ['scc']
            if op.startswith('s_addk') or op.startswith('s_mulk'):
                self.rd += R[0]
        elif op.startswith('v_'):
            self.kind = 'trans' if base in TRANS else 'valu'
            if base.startswith('v_permlane') or base.startswith('v_swap'):
                self.wr = R[0] + R[1]; self.rd = R[0] + R[1]
            elif '_co_' in base:
                self.wr = R[0] + R[1]; self.rd = flat(R[2:])
            else:
                self.wr = list(R[0]); self.rd = flat(R[1:])
            if base.startswith('v_fmac') or base.startswith('v_dot2c') or base.startswith('v_writelane'):
                self.rd += R[0]
            if base.startswith('v_cndmask') and len(ops) == 3:
                self.rd += ['vcc']
        else:
            raise ValueError('unknown instruction: ' + text)

    def is_valu(self):
        return self.kind in ('valu', 'trans')


class Label:
    def __init__(self, name):
        self.name = name


class Raw:
    def __init__(self, text):
        self.text = text


class WaitTag:
    def __init__(self, tags):
        self.tags = set(tags if isinstance(tags, (list, tuple, set)) else [tags])


class WaitRegs:
    def __init__(self, regs):
        self.regs = set(regs)


class WaitAll:
    def __init__(self, vm=True, lgkm=True):
        self.vm = vm; self.lgkm = lgkm


class Block:
    def __init__(self, lines, drains_vm=False):
        self.lines = lines; self.drains_vm = drains_vm


def vr(c, a, n):
    return f'{c}{a}' if n == 1 else f'{c}[{a}:{a + n - 1}]'


def rlist(c, a, n):
    return [f'{c}{k}' for k in range(a, a + n)]


def insert_waits(items):
    out = []
    vm = []
    lg = []
    seen_tags = set()

    def emit(nvm, nlg):
        nonlocal vm, lg
        parts = []
        if nvm is not None and nvm < len(vm):
            assert nvm <= 63
            parts.append(f'vmcnt({nvm})')
            vm = vm[len(vm) - nvm:] if nvm else []
        if nlg is not None and nlg < len(lg):
            if any(x.kind == 'smem' for x in lg):
                nlg = 0
            nlg = min(nlg, 15)
            parts.append(f'lgkmcnt({nlg})')
            lg = lg[len(lg) - nlg:] if nlg else []
        if parts:
            out.append(Ins('s_waitcnt ' + ' '.join(parts)))

    def need(queue, pred):
        idx = -1
        for k, x in enumerate(queue):
            if pred(x):
                idx = k
        return None if idx < 0 else len(queue) - 1 - idx

    for it in items:
        if isinstance(it, Ins):
            touch = set(it.rd) | set(it.wr) | set(it.extra_rd)
            a = need(vm, lambda x: x.wr and touch.intersection(x.wr))
            b = need(lg, lambda x: x.wr and touch.intersection(x.wr))
            emit(a, b)
            if it.kind in ('vld', 'vst', 'dma'):
                if len(vm) >= 63:
                    emit(62, None)
                vm.append(it)
            elif it.kind in ('dsr', 'dsw', 'smem'):
                lg.append(it)
            if it.tag:
                seen_tags.add(it.tag)
            out.append(it)
        elif isinstance(it, WaitTag):
            for t in it.tags:
                assert t in seen_tags, f'wait for tag {t} before any op carries it'
            emit(need(vm, lambda x: x.tag in it.tags), need(lg, lambda x: x.tag in it.tags))
        elif isinstance(it, WaitRegs):
            emit(need(vm, lambda x: x.wr and it.regs.intersection(x.wr)), need(lg, lambda x: x.wr and it.regs.intersection(x.wr)))
        elif isinstance(it, WaitAll):
            emit(0 if it.vm else None, 0 if it.lgkm else None)
        elif isinstance(it, Block):
            out.append(it)
            if it.drains_vm:
                vm = []
        else:
            out.append(it)
    return out


def hazard_need(p, c):
    n = 0
    pw = set(p.wr)
    crd, cwr = set(c.rd), set(c.wr)
    vec_w = {r for r in pw if r[0] in 'va' and r != 'vcc'}
    sc_w = {r for r in pw if r[0] == 's' and r != 'scc' or r == 'vcc'}
    mem = c.kind in ('vld', 'vst', 'dma', 'dsr', 'dsw')
    if p.is_valu():
        if c.kind == 'mfma' and vec_w & crd:
            n = max(n, 2)
        if p.kind == 'trans' and (c.kind == 'valu' or mem) and vec_w & crd:
            n = max(n, 1)
        if c.is_valu():
            if (c.op.startswith('v_readlane') or c.op.startswith('v_readfirstlane')) and vec_w & crd:
                n = max(n, 1)
            if (c.op.startswith('v_permlane') or 'dpp' in c.text or 'row_' in c.text or 'quad_perm' in c.text) and vec_w & crd:
                n = max(n, 2)
            if sc_w & crd:
                n = max(n, 4 if (c.op.startswith('v_readlane') or c.op.startswith('v_writelane')) else 2)
            if ('sdwa' in p.text or 'op_sel' in p.text) and vec_w & (crd | cwr):
                n = max(n, 1)
        if c.kind in ('vld', 'vst', 'dma') and sc_w & crd:
            n = max(n, 5)
        if c.kind in ('salu', 'br', 'smem') and sc_w & crd:
            n = max(n, 2)
        if p.op.startswith('v_dot2') and vec_w & (crd | cwr):
            same_c = c.op == p.op and not (vec_w & set(c.rd[:2] if p.op.startswith('v_dot2c') else c.rd[:-1]))
            if not same_c:
                n = max(n, 3)
        if 'exec' in pw:
            n = max(n, 5)
    if p.kind == 'mfma':
        big = 12 if p.passes == 8 else 8
        if c.kind == 'mfma':
            if pw & (set(c.srcA) | set(c.srcB)):
                n = max(n, big)
            if pw & set(c.srcC):
                if not (list(c.srcC) == list(p.wr) and c.passes == p.passes):
                    n = max(n, big - 2)
            elif pw & cwr:
                n = max(n, big - 2)
        elif (c.is_valu() or mem) and pw & (crd | cwr):
            n = max(n, big)
        if (c.is_valu() or c.kind in ('vld', 'dsr')) and set(p.srcC) & cwr:
            n = max(n, 7 if p.passes == 8 else 3)
    if p.kind == 'salu' and 'm0' in pw and c.kind == 'dma':
        n = max(n, 1)
    if p.kind == 'vst' and p.wide and set(p.data) & cwr:
        n = max(n, 2)
    return n


def states(ins):
    if ins.op == 's_nop':
        return int(ins.text.split()[1]) + 1
    return 1


def insert_nops(items, report=None):
    out = []
    hist = []
    for it in items:
        if isinstance(it, Ins):
            need, dist = 0, 0
            why = None
            for p in reversed(hist):
                h = hazard_need(p, it) - dist
                if h > need:
                    need, why = h, p
                dist += states(p)
                if dist >= 13:
                    break
            if need > 0:
                nop = Ins(f's_nop {need - 1}')
                out.append(nop); hist.append(nop)
                if report is not None:
                    report.append((need, why.text, it.text))
            out.append(it); hist.append(it)
            hist = hist[-16:]
        elif isinstance(it, Block):
            out.append(it)
        else:
            out.append(it)
    return out


def render(items):
    s = []
    for it in items:
        if isinstance(it, Ins):
            s.append('    ' + it.text)
        elif isinstance(it, Label):
            s.append(it.name + ':')
        elif isinstance(it, Raw):
            s.append(it.text)
        elif isinstance(it, Block):
            s += it.lines
    return '\n'.join(s) + '\n'
```

```python
import sys, math, struct
from asmir import *

KNAME = 'recurrent_scan__sliding_block__swiglu_ffn__prompt_kernel'

WS_F1 = 0x0000
WS_F2 = 0x10000
WS_F3 = 0x20000
WS_F4 = 0x30000
WS_QKV = 1 << 20
QKV_BLK = 240 * 2048
WS_H = 9 << 20
H_BLK = 192 * 1024
WS_O = 16 << 20
O_BLK = 80 * 1024
WS_WT = 19 << 20
WS_STAMP = 24 << 20
WS_BYTES = 32 << 20
OOB = 0x7ff00000

S_X, S_WQ, S_GU, S_RT, S_OUT, S_WS, S_DBG = 24, 28, 32, 36, 40, 44, 48
sI, sJ, sW, sCU = 52, 53, 54, 55
sT0, sT1, sT2, sT3 = 56, 57, 58, 59
sLdsW = 60
sOff = 61
sMask = 62
sQS = 63
sSt = 64
sHi = 66
sBlk = 68
sPf = 71
sMk = 72
sOnes = 76
sSpin = 77
sHb, sOb, sWb = 78, 79, 80
sKV = 81
sStamp = 82

def srd(n): return f's[{n}:{n + 3}]'

SLOT = 16384
K_BASE = 6 * SLOT
V_BASE = K_BASE + 5 * 6144
V_CLASS = [0, 1, 2, 0, 1]
def v_oct(o): return V_BASE + o * 6400 + 64 * V_CLASS[o]
C_BASE = 192
BIG = 0xF180

def f2u(x): return struct.unpack('<I', struct.pack('<f', x))[0]
LOG2E = 1.4426950408889634


class G:
    def __init__(self, opt):
        self.o = opt
        self.it = []
        self.tail = []
        self.nstamp = 0
        self.npoll = 0

    def e(self, text, tag=None, extra_rd=()):
        i = Ins(text, tag, extra_rd); self.it.append(i); return i

    def add(self, x):
        if isinstance(x, str): self.e(x)
        elif isinstance(x, (list, tuple)):
            for y in x: self.add(y)
        else: self.it.append(x)

    def stamp(self, name):
        if not self.o.get('prof'): return []
        k = self.nstamp; self.nstamp += 1
        assert k < 10
        self.o.setdefault('stamps', []).append(name)
        return [Ins(f's_memtime s[{sStamp + 2 * k}:{sStamp + 2 * k + 1}]')]

    def poll_check(self, loads, cmp_lines):
        k = self.npoll; self.npoll += 1
        seq = [Ins(x) for x in cmp_lines] + [Ins(f's_cbranch_vccnz L_retry{k}'), Label(f'L_cont{k}')]
        t = [f'L_retry{k}:', f'    s_mov_b32 s{sSpin}, 0x40000', f'L_spin{k}:', '    s_sleep 2']
        t += ['    ' + l for l in loads] + ['    s_waitcnt vmcnt(0)']
        for x in cmp_lines: t += ['    ' + x, '    s_nop 1']
        t += [f'    s_sub_u32 s{sSpin}, s{sSpin}, 1', f'    s_cbranch_scc1 L_cont{k}', f'    s_cbranch_vccnz L_spin{k}', f'    s_branch L_cont{k}']
        self.tail += t
        return seq


def build(opt):
    g = G(opt)
    e = g.e
    XN = 96
    ACC2 = 32
    A1, A3, RING, RTA = 0, 64, 96, 124
    D = 6; NF = 7
    vL = 1
    vX = [32, 33, 34, 35]
    vQ = [36, 37, 38, 39]
    vRT = [40, 41, 42, 43]
    vXR = [44, 45, 46, 47]
    vRTr, vRTs = 48, 49
    vS = [50, 51, 52, 53]
    vN = [54, 55, 56, 57]
    vGA = [2, 3, 4, 5]; vGB = [6, 7, 8, 9]
    vTq = [10, 11, 12, 13]; vTa = [14, 15, 16, 17]
    vTb = [10, 11]
    vR, vNB = 18, 19
    vT = list(range(20, 32))

    e('s_cmp_ge_u32 s2, 256')
    e('s_cbranch_scc1 L_end')
    g.add(g.stamp('entry'))
    e('s_load_dwordx16 s[4:19], s[0:1], 0')
    e('s_load_dwordx4 s[20:23], s[0:1], 64')
    e(f'v_and_b32 v{vL}, 63, v0')
    e(f'v_lshrrev_b32 v{vT[0]}, 6, v0')
    e(f's_and_b32 s{sT0}, s2, 7')
    e(f's_lshr_b32 s{sT1}, s2, 3')
    e(f'v_readfirstlane_b32 s{sW}, v{vT[0]}')
    e(f's_and_b32 s{sI}, s{sT0}, 1')
    e(f's_lshl_b32 s{sI}, s{sI}, 3')
    e(f's_lshr_b32 s{sT2}, s{sT1}, 2')
    e(f's_add_u32 s{sI}, s{sI}, s{sT2}')
    e(f's_lshr_b32 s{sJ}, s{sT0}, 1')
    e(f's_lshl_b32 s{sJ}, s{sJ}, 2')
    e(f's_and_b32 s{sT1}, s{sT1}, 3')
    e(f's_add_u32 s{sJ}, s{sJ}, s{sT1}')
    e(f's_lshl_b32 s{sCU}, s{sI}, 4')
    e(f's_add_u32 s{sCU}, s{sCU}, s{sJ}')
    e(f's_lshl_b32 s{sLdsW}, s{sW}, 12')
    e(f's_lshl_b32 s{sT0}, s{sI}, 2')
    e(f's_add_u32 s{sT0}, s{sT0}, s{sW}')
    e(f's_mul_i32 s{sT0}, s{sT0}, {32 * 1280}')
    e(f'v_lshrrev_b32 v{vT[0]}, 3, v{vL}')
    e(f'v_mul_u32_u24 v{vT[0]}, 1280, v{vT[0]}')
    e(f'v_add_u32 v{vT[0]}, s{sT0}, v{vT[0]}')
    e(f'v_lshrrev_b32 v{vT[1]}, 4, v{vL}')
    e(f'v_and_b32 v{vT[2]}, 7, v{vL}')
    e(f'v_xor_b32 v{vT[2]}, v{vT[1]}, v{vT[2]}')
    e(f'v_lshl_add_u32 v{vX[0]}, v{vT[2]}, 4, v{vT[0]}')
    e(f'v_xor_b32 v{vX[1]}, 64, v{vX[0]}')
    e(f'v_add_u32 v{vX[2]}, {2 * (8 * 1280 - 1024)}, v{vX[0]}')
    e(f'v_add_u32 v{vX[3]}, {3 * (8 * 1280 - 1024)}, v{vX[1]}')
    e(f'v_add_u32 v{vX[1]}, {8 * 1280 - 1024}, v{vX[1]}')

    def mk_srd(n, p, size):
        e(f's_mov_b32 s{n}, s{p}'); e(f's_and_b32 s{n + 1}, s{p + 1}, 0xffff')
        e(f's_mov_b32 s{n + 2}, {size}'); e(f's_mov_b32 s{n + 3}, 0x20000')
    mk_srd(S_X, 4, 2048 * 1280)

    ent = [('x', s) for s in range(10)] + [('q', 0), ('q', 1), ('q', 2), ('rt', 0)] + [('q', s) for s in range(3, 10)] \
        + [('ga', s) for s in range(10)] + [('gb', s) for s in range(5)]
    eidx = {k: n for n, k in enumerate(ent)}
    def slot_of(k): return (eidx[k] % 10) * SLOT

    def dma_entry(n):
        kind, s = ent[n]
        so, vo, sr = {'x': (128 * s, vX, S_X), 'q': (64 * 3840 * s, vQ, S_WQ), 'rt': (0, vRT, S_RT),
                      'ga': (64 * 3072 * s, vGA, S_GU), 'gb': (128 * 3072 * s, vGB, S_GU)}[kind]
        pre = [Ins(f's_add_u32 m0, s{sLdsW}, {(n % 10) * SLOT}'), Ins(f's_mov_b32 s{sOff}, {so}')]
        return pre, [Ins(f'buffer_load_dwordx4 v{vo[u]}, {srd(sr)}, s{sOff} offen offset:{1024 * u} lds', tag=f'e{n}') for u in range(4)]

    NI = opt.get('ni', 10)
    for n in range(NI):
        pre, d = dma_entry(n); g.add(pre); g.add(d)

    mk_srd(S_WQ, 6, 640 * 3840)
    mk_srd(S_OUT, 18, 2048 * 1280)
    mk_srd(S_DBG, 20, 256)
    mk_srd(S_WS, 22, WS_BYTES)
    e(f's_cmp_ge_u32 s{sW}, 2')
    e(f's_cselect_b32 s{S_GU}, s14, s12'); e(f's_cselect_b32 s{S_GU + 1}, s15, s13')
    e(f's_and_b32 s{S_GU + 1}, s{S_GU + 1}, 0xffff')
    e(f's_mov_b32 s{S_GU + 2}, {640 * 3072}'); e(f's_mov_b32 s{S_GU + 3}, 0x20000')
    e(f's_mov_b32 s{sMask}, 0xffff0000')
    e(f's_mov_b32 s{sOnes}, 0x3f803f80')
    e(f's_mov_b32 s{sHi}, 0'); e(f's_mov_b32 s{sHi + 1}, -1')
    e(f's_cmp_lt_u32 s{sJ}, 5')
    e(f's_cselect_b32 s{sQS}, {hex(f2u(20 ** -0.5 * LOG2E))}, 1.0')

    vFl = 31
    e(f's_lshr_b32 s{sT0}, s{sJ}, 2')
    e(f's_lshl_b32 s{sT1}, s{sI}, 2')
    e(f's_add_u32 s{sT0}, s{sT0}, s{sT1}')
    e(f's_lshl_b32 s{sT0}, s{sT0}, 1')
    e(f's_lshr_b32 s{sT1}, s{sW}, 1')
    e(f's_add_u32 s{sT0}, s{sT0}, s{sT1}')
    e(f's_lshl_b32 s{sT0}, s{sT0}, 7')
    e(f's_and_b32 s{sT1}, s{sJ}, 3')
    e(f's_lshl_b32 s{sT1}, s{sT1}, 3')
    e(f's_add_u32 s{sT0}, s{sT0}, s{sT1}')
    e(f's_and_b32 s{sT1}, s{sW}, 1')
    e(f's_lshl_b32 s{sT1}, s{sT1}, 2')
    e(f's_add_u32 s3, s{sT0}, s{sT1}')
    e(f's_lshl_b32 s{sT2}, s{sCU}, 4')
    e(f's_lshl_b32 s{sT1}, s{sW}, 2')
    e(f's_add_u32 s2, s{sT2}, s{sT1}')
    e(f'v_lshlrev_b32 v{vT[0]}, 16, v{vL}')
    e(f'v_add_u32 v{vT[0]}, s3, v{vT[0]}')
    e(f'v_writelane_b32 v{vT[0]}, s2, 0')
    e(f'v_mov_b32 v{vT[3]}, 0')
    e('s_mov_b64 exec, 15')
    e(f'buffer_store_dword v{vT[3]}, v{vT[0]}, {srd(S_WS)}, 0 offen sc1', tag='reset')
    e('s_mov_b64 exec, -1')

    e(f's_mul_i32 s{sT0}, s{sW}, {16 * 3840}')
    e(f's_lshl_b32 s{sT1}, s{sJ}, 8')
    e(f's_add_u32 s{sT0}, s{sT0}, s{sT1}')
    e(f's_cmp_eq_u32 s{sJ}, 15')
    e(f's_cselect_b32 s{sT0}, {OOB}, s{sT0}')
    e(f'v_mul_u32_u24 v{vT[0]}, 3840, v{vT[1]}')
    e(f'v_add_u32 v{vT[0]}, s{sT0}, v{vT[0]}')
    e(f'v_lshlrev_b32 v{vT[2]}, 2, v{vT[1]}')
    e(f'v_and_b32 v{vT[4]}, 15, v{vL}')
    e(f'v_xor_b32 v{vT[2]}, v{vT[2]}, v{vT[4]}')
    e(f'v_lshl_add_u32 v{vQ[0]}, v{vT[2]}, 4, v{vT[0]}')
    for u in range(1, 4): e(f'v_add_u32 v{vQ[u]}, {u * (4 * 3840 - 1024)}, v{vQ[0]}')
    e(f's_lshl_b32 s{sT0}, s{sW}, 8')
    e(f's_add_u32 s{sT0}, s{sT0}, s{sCU}')
    e(f's_mul_i32 s{sT1}, s{sT0}, 6554')
    e(f's_lshr_b32 s{sT1}, s{sT1}, 16')
    e(f's_mul_i32 s{sT2}, s{sT1}, 10')
    e(f's_sub_u32 s{sT2}, s{sT0}, s{sT2}')
    e(f's_cmp_ge_u32 s{sT1}, 48')
    e(f's_cselect_b32 s{S_RT}, s8, s16'); e(f's_cselect_b32 s{S_RT + 1}, s9, s17')
    e(f's_cselect_b32 s{S_RT + 2}, {640 * 1280}, {1536 * 1280}') if False else None
    e(f's_mov_b32 s{S_RT + 2}, {1536 * 1280}')
    e(f's_cselect_b32 s{S_RT + 2}, {640 * 1280}, s{S_RT + 2}')
    e(f's_cselect_b32 s{sT3}, 48, 0')
    e(f's_and_b32 s{S_RT + 1}, s{S_RT + 1}, 0xffff')
    e(f's_mov_b32 s{S_RT + 3}, 0x20000')
    e(f's_sub_u32 s{sT3}, s{sT1}, s{sT3}')
    e(f's_mul_i32 s{sT3}, s{sT3}, {32 * 1280}')
    e(f's_lshl_b32 s{sT2}, s{sT2}, 7')
    e(f's_add_u32 s{sT3}, s{sT3}, s{sT2}')
    e(f'v_lshrrev_b32 v{vT[0]}, 3, v{vL}')
    e(f'v_mul_u32_u24 v{vT[0]}, 1280, v{vT[0]}')
    e(f'v_and_b32 v{vT[2]}, 7, v{vL}')
    e(f'v_lshl_add_u32 v{vT[0]}, v{vT[2]}, 4, v{vT[0]}')
    e(f'v_add_u32 v{vRT[0]}, s{sT3}, v{vT[0]}')
    for u in range(1, 4): e(f'v_add_u32 v{vRT[u]}, {u * (8 * 1280 - 1024)}, v{vRT[0]}')
    e(f's_lshl_b32 s{sT1}, s{sT0}, 12')
    e(f's_add_u32 s{sT1}, s{sT1}, {WS_WT}')
    e(f's_cmp_ge_u32 s{sT0}, 680')
    e(f's_cselect_b32 s{sT1}, {OOB}, s{sT1}')
    e(f'v_lshl_add_u32 v{vRTs}, v{vL}, 4, s{sT1}')
    vh, vgrp, vr_, vck = vT[5], vT[6], vT[7], vT[8]
    e(f'v_lshrrev_b32 v{vh}, 5, v{vL}')
    e(f'v_and_b32 v{vgrp}, 1, v{vT[1]}')
    e(f'v_bfe_u32 v{vr_}, v{vL}, 2, 2')
    e(f'v_and_b32 v{vT[0]}, 1, v{vL}')
    e(f'v_bfe_u32 v{vT[2]}, v{vL}, 1, 1')
    e(f'v_lshl_add_u32 v{vck}, v{vT[0]}, 1, v{vT[2]}')
    e(f'v_lshlrev_b32 v{vck}, 3, v{vck}')
    e(f'v_lshl_add_u32 v{vT[0]}, v{vT[1]}, 3, v{vr_}')
    e(f'v_and_b32 v{vT[2]}, 3, v{vL}')
    e(f'v_lshlrev_b32 v{vT[2]}, 3, v{vT[2]}')
    e(f'v_lshl_add_u32 v{vT[0]}, v{vT[0]}, 7, v{vT[2]}')
    e(f's_add_u32 s{sT0}, s{sLdsW}, {slot_of(("rt", 0))}')
    e(f'v_add_u32 v{vRTr}, s{sT0}, v{vT[0]}')
    vrow = vT[9]
    e(f'v_lshl_add_u32 v{vrow}, v{vh}, 3, v{vr_}')
    e(f'v_lshl_add_u32 v{vT[0]}, v{vgrp}, 5, v{vck}')
    e(f'v_lshl_add_u32 v{vT[0]}, v{vr_}, 6, v{vT[0]}')
    e(f'v_lshl_add_u32 v{vTq[0]}, v{vrow}, 8, v{vT[0]}')
    for T in range(1, 4): e(f'v_xor_b32 v{vTq[T]}, {T << 6}, v{vTq[0]}')
    e(f'v_and_b32 v{vT[0]}, 2, v{vr_}')
    e(f'v_or_b32 v{vT[0]}, v{vT[0]}, v{vgrp}')
    e(f'v_lshl_add_u32 v{vT[0]}, v{vT[0]}, 5, v{vck}')
    e(f'v_lshl_add_u32 v{vT[0]}, v{vrow}, 7, v{vT[0]}')
    e(f'v_lshl_add_u32 v{vTa[0]}, v{vgrp}, 13, v{vT[0]}')
    for T in range(1, 4): e(f'v_xor_b32 v{vTa[T]}, {T << 5}, v{vTa[0]}')
    vTb0 = 30
    e(f'v_lshl_add_u32 v{vT[0]}, v{vgrp}, 5, v{vck}')
    e(f'v_lshl_add_u32 v{vT[0]}, v{vrow}, 6, v{vT[0]}')
    e(f'v_lshl_add_u32 v{vTb0}, v{vgrp}, 13, v{vT[0]}')
    e(f's_and_b32 s{sT0}, s{sW}, 1')
    e(f's_lshr_b32 s{sT1}, s{sW}, 1')
    e(f's_and_b32 s{sT2}, s{sJ}, 1')
    e(f's_mul_i32 s{sT3}, s{sJ}, 192')
    e(f's_lshl_b32 s{sSt}, s{sT2}, 6')
    e(f's_add_u32 s{sSt}, s{sSt}, s{sT3}')
    e(f's_mul_i32 s{sPf}, s{sT0}, {32 * 3072}')
    e(f's_add_u32 s{sPf}, s{sPf}, s{sSt}')
    e(f'v_lshl_add_u32 v{vT[0]}, v{vgrp}, 1, s{sT1}')
    e(f'v_lshlrev_b32 v{vT[0]}, 1, v{vT[0]}')
    e(f'v_and_b32 v{vT[2]}, 7, v{vL}')
    e(f'v_xor_b32 v{vT[0]}, v{vT[0]}, v{vT[2]}')
    e(f'v_lshrrev_b32 v{vT[2]}, 3, v{vL}')
    e(f'v_mul_u32_u24 v{vT[2]}, 3072, v{vT[2]}')
    e(f'v_lshl_add_u32 v{vT[0]}, v{vT[0]}, 4, v{vT[2]}')
    e(f'v_add_u32 v{vGA[0]}, s{sPf}, v{vT[0]}')
    for u in range(1, 4): e(f'v_add_u32 v{vGA[u]}, {u * (8 * 3072 - 1024)}, v{vGA[0]}')
    e(f's_xor_b32 s{sT2}, s{sT2}, 1')
    e(f's_lshl_b32 s{sT2}, s{sT2}, 7')
    e(f's_add_u32 s{sT3}, s{sT3}, s{sT2}')
    e(f's_mul_i32 s{sPf}, s{sT0}, {64 * 3072}')
    e(f's_add_u32 s{sPf}, s{sPf}, s{sT3}')
    e(f's_lshl_b32 s{sT2}, s{sT1}, 1')
    e(f'v_and_b32 v{vT[0]}, 3, v{vL}')
    e(f'v_xor_b32 v{vT[0]}, s{sT2}, v{vT[0]}')
    e(f'v_lshrrev_b32 v{vT[2]}, 2, v{vL}')
    e(f'v_mul_u32_u24 v{vT[2]}, 3072, v{vT[2]}')
    e(f'v_lshl_add_u32 v{vT[0]}, v{vT[0]}, 4, v{vT[2]}')
    e(f'v_add_u32 v{vGB[0]}, s{sPf}, v{vT[0]}')
    for u in range(1, 4): e(f'v_add_u32 v{vGB[u]}, {u * (16 * 3072 - 1024)}, v{vGB[0]}')
    e(f's_lshl_b32 s{sT2}, s{sI}, 1')
    e(f's_add_u32 s{sT2}, s{sT2}, s{sT1}')
    e(f's_mul_i32 s6, s{sT2}, {O_BLK}')
    e(f's_mul_i32 s{sT2}, s{sT2}, {H_BLK}')
    e(f's_add_u32 s{sT2}, s{sT2}, {WS_H}')
    e(f's_lshl_b32 s4, s{sSt}, 6')
    e(f's_add_u32 s4, s4, s{sT2}')
    e(f's_lshl_b32 s5, s{sT3}, 6')
    e(f's_add_u32 s5, s5, s{sT2}')
    e(f's_mul_i32 s{sT2}, s{sJ}, {5 * 1024}')
    e(f's_add_u32 s6, s6, s{sT2}')
    e(f's_add_u32 s6, s6, {WS_O}')
    e(f'v_and_b32 v{vT[0]}, 31, v{vL}')
    e(f'v_bfe_u32 v{vT[2]}, v{vL}, 1, 3')
    e(f'v_xor_b32 v{vT[2]}, v{vT[2]}, v{vh}')
    e(f'v_lshlrev_b32 v{vT[2]}, 4, v{vT[2]}')
    e(f'v_lshl_add_u32 v{vT[0]}, v{vT[0]}, 7, v{vT[2]}')
    e(f'v_add_u32 v{vXR[0]}, s{sLdsW}, v{vT[0]}')
    for s in range(1, 4): e(f'v_xor_b32 v{vXR[s]}, {s << 5}, v{vXR[0]}')
    for k in range(4): e(f'v_mov_b32 v{vS[k]}, 0')

    class Win:
        def __init__(self, regs): self.regs = regs; self.cur = {r: 0 for r in regs}
        def off(self, reg, byte):
            w = (byte // 65536) * 65536
            fix = []
            if w != self.cur[reg]:
                d = w - self.cur[reg]
                fix = [Ins(f'v_add_u32 v{reg}, {d}, v{reg}') if d > 0 else Ins(f'v_subrev_u32 v{reg}, {-d}, v{reg}')]
                self.cur[reg] = w
            return fix, byte - w

    wx = Win(vXR)
    nxt = NI
    for s in range(10):
        g.add(WaitTag(f'e{s}'))
        for ks in range(4):
            fix, im = wx.off(vXR[ks], s * SLOT)
            g.add(fix)
            e(f'ds_read_b128 {vr("v", XN + 16 * s + 4 * ks, 4)}, v{vXR[ks]} offset:{im}')
        if s > 0:
            for d in range(16):
                r = XN + 16 * (s - 1) + d
                e(f'v_dot2c_f32_bf16 v{vS[d & 1]}, s{sOnes}, v{r}')
                e(f'v_dot2c_f32_bf16 v{vS[2 + (d & 1)]}, v{r}, v{r}')
        g.add(WaitRegs(rlist('v', XN + 16 * s, 16)))
        while nxt <= s + 10:
            pre, d = dma_entry(nxt); g.add(pre); g.add(d); nxt += 1
    for d in range(16):
        r = XN + 16 * 9 + d
        e(f'v_dot2c_f32_bf16 v{vS[d & 1]}, s{sOnes}, v{r}')
        e(f'v_dot2c_f32_bf16 v{vS[2 + (d & 1)]}, v{r}, v{r}')
    g.add(g.stamp('x_in'))
    steps = [('q', s) for s in range(10)] + [('ga', s) for s in range(10)] + [('gb', s) for s in range(5)]
    groups = []
    for si, (kind, s) in enumerate(steps):
        nks, nT = (8, 2) if kind == 'gb' else (4, 4)
        for ks in range(nks):
            for T in range(nT):
                groups.append((si, kind, s, ks, T))
    wins = {'q': Win(vTq), 'ga': Win(vTa), 'gb': Win(vTb)}
    def frag_reads(gi):
        si, kind, s, ks, T = groups[gi]
        w = wins[kind]; reg = w.regs[T]
        kst, rho = {'q': (4096, 1024), 'ga': (2048, 512), 'gb': (1024, 256)}[kind]
        fix, im = w.off(reg, slot_of((kind, s)))
        a = RING + 4 * (gi % NF)
        return fix, [Ins(f'ds_read_b64_tr_b16 a[{a + 2 * p}:{a + 2 * p + 1}], v{reg} offset:{im + ks * kst + p * rho}') for p in range(2)]
    def mfma_of(gi):
        si, kind, s, ks, T = groups[gi]
        kk = (8 * s + ks) if kind == 'gb' else (4 * s + ks)
        acc = vr('a', A1 + 16 * T, 16) if kind == 'q' else vr('v', ACC2 + 16 * T, 16) if kind == 'ga' else vr('a', A3 + 16 * T, 16)
        a = RING + 4 * (gi % NF)
        return Ins(f'v_mfma_f32_32x32x16_bf16 {acc}, a[{a}:{a + 3}], {vr("v", XN + 4 * kk, 4)}, {acc if kk else 0}')

    g.add(WaitTag([f'e{eidx[steps[0]]}', 'reset']))
    e('s_barrier')
    for gi in range(D):
        fix, rd = frag_reads(gi); g.add(fix); g.add(rd)
    a, b, c, d_ = vN
    e(f'v_add_f32 v{vS[0]}, v{vS[0]}, v{vS[1]}')
    e(f'v_add_f32 v{vS[2]}, v{vS[2]}, v{vS[3]}')
    e(f'v_mov_b32 v{vS[1]}, v{vS[0]}')
    e(f'v_mov_b32 v{vS[3]}, v{vS[2]}')
    e(f'v_permlane32_swap_b32 v{vS[0]}, v{vS[1]}')
    e(f'v_permlane32_swap_b32 v{vS[2]}, v{vS[3]}')
    e(f'v_add_f32 v{vS[0]}, v{vS[0]}, v{vS[1]}')
    e(f'v_add_f32 v{vS[2]}, v{vS[2]}, v{vS[3]}')
    e(f'v_mul_f32 v{a}, {hex(f2u(1 / 640))}, v{vS[0]}')
    e(f'v_mul_f32 v{b}, {hex(f2u(1 / 640))}, v{vS[2]}')
    e(f'v_fma_f32 v{b}, -v{a}, v{a}, v{b}')
    e(f'v_max_f32 v{b}, 0, v{b}')
    e(f'v_cvt_pk_bf16_f32 v{c}, v{a}, v{b}')
    e(f'v_lshlrev_b32 v{a}, 16, v{c}')
    e(f'v_and_b32 v{b}, s{sMask}, v{c}')
    e(f'v_add_f32 v{b}, {hex(f2u(1e-5))}, v{b}')
    e(f'v_cvt_pk_bf16_f32 v{b}, v{b}, v{b}')
    e(f'v_and_b32 v{b}, s{sMask}, v{b}')
    e(f'v_sqrt_f32 v{b}, v{b}')
    e(f'v_cvt_pk_bf16_f32 v{b}, v{b}, v{b}')
    e(f'v_and_b32 v{b}, s{sMask}, v{b}')
    e(f'v_rcp_f32 v{vR}, v{b}')
    e(f'v_mul_f32 v{vNB}, -v{a}, v{vR}') if False else e(f'v_mul_f32_e64 v{vNB}, -v{a}, v{vR}')
    def norm_ops(dw):
        r = XN + dw; t0, t1 = vN[2 * (dw & 1)], vN[2 * (dw & 1) + 1]
        return [Ins(f'v_lshlrev_b32 v{t0}, 16, v{r}'), Ins(f'v_and_b32 v{t1}, s{sMask}, v{r}'),
                Ins(f'v_fma_f32 v{t0}, v{t0}, v{vR}, v{vNB}'), Ins(f'v_fma_f32 v{t1}, v{t1}, v{vR}, v{vNB}'),
                Ins(f'v_cvt_pk_bf16_f32 v{r}, v{t0}, v{t1}')]
    for dw in range(5): g.add(norm_ops(dw))
    g.add(g.stamp('p1_start'))

    NG = len(groups)
    G2, G3 = 160, 320
    mem = [[] for _ in range(NG + 1)]
    fil = [[] for _ in range(NG + 1)]
    pre = [[] for _ in range(NG + 1)]
    first_g = {}
    for gi, x in enumerate(groups): first_g.setdefault(x[0], gi)
    for gi in range(G2):
        if gi + 5 < 160: fil[gi] += norm_ops(gi + 5)
    for si in range(len(steps) - 1):
        gb = first_g[si + 1] - D
        pre[gb] += [WaitTag(f'e{eidx[steps[si + 1]]}'), Ins('s_barrier')]
        if si >= 1:
            free_upto = eidx[steps[si]] - 1
            pos = gb
            while nxt < len(ent) and nxt - 10 <= free_upto:
                p_, d = dma_entry(nxt); nxt += 1
                mem[pos] += p_
                for u in range(4): mem[pos + 1 + u].append(d[u])
                pos += 5
    assert nxt == len(ent)
    g0 = first_g[2] + 1
    mem[g0].append(WaitTag(f'e{eidx[("rt", 0)]}'))
    for y in range(4):
        mem[g0 + y] += [Ins(f'ds_read_b64_tr_b16 a[{RTA + 4 * y + 2 * p}:{RTA + 4 * y + 2 * p + 1}], v{vRTr} offset:{32 * y + 512 * p}') for p in range(2)]
    for y in range(4):
        mem[first_g[3] + 1 + 2 * y].append(Ins(f'buffer_store_dwordx4 a[{RTA + 4 * y}:{RTA + 4 * y + 3}], v{vRTs}, {srd(S_WS)}, 0 offen offset:{1024 * y} sc1', tag='rts'))
    gb = first_g[8] - D
    pre[gb].insert(0, WaitTag('rts'))
    fil[gb - 1] += [Ins(f'v_mov_b32 v{vT[0]}, s{sCU}'), Ins(f'v_mov_b32 v{vT[1]}, 1')]
    mem[gb + 6] += [Ins(f's_cmp_eq_u32 s{sW}, 0'), Ins('s_cselect_b64 exec, 1, 0') if False else Ins(f's_cselect_b32 s{sT0}, 0, {OOB}'),
                    Ins('s_mov_b64 exec, 1'),
                    Ins(f'buffer_store_byte v{vT[1]}, v{vT[0]}, {srd(S_DBG)}, s{sT0} offen sc1'), Ins('s_mov_b64 exec, -1')]

    def spread(ops, start, per, total=None):
        gi = start; n = 0
        for o in ops:
            if isinstance(o, Ins) and o.is_valu():
                cost = 2 if o.kind == 'trans' else 1
                if n + cost > per and n > 0:
                    gi += 1; n = 0
                fil[min(gi, NG)].append(o); n += cost
            else:
                if n > 0:
                    gi += 1; n = 0
                mem[min(gi, NG)].append(o)
        return gi

    vSt = 12
    vFa = 13
    ops = [Ins(f'v_mov_b32 v{vTb[0]}, v{vTb0}'), Ins(f'v_xor_b32 v{vTb[1]}, 32, v{vTb0}'),
           Ins(f'v_and_b32 v{vT[0]}, 31, v{vL}'), Ins(f'v_lshrrev_b32 v{vT[1]}, 5, v{vL}'),
           Ins(f'v_lshlrev_b32 v{vT[0]}, 4, v{vT[0]}'), Ins(f'v_lshl_add_u32 v{vSt}, v{vT[1]}, 11, v{vT[0]}'),
           Ins(f's_mul_i32 s{sSt}, s{sI}, {QKV_BLK}'), Ins(f's_lshl_b32 s{sT0}, s{sJ}, 15'), Ins(f's_add_u32 s{sSt}, s{sSt}, s{sT0}'),
           Ins(f's_lshl_b32 s{sT0}, s{sW}, 9'), Ins(f's_add_u32 s{sSt}, s{sSt}, s{sT0}'), Ins(f's_add_u32 s{sSt}, s{sSt}, {WS_QKV}'),
           Ins(f's_cmp_eq_u32 s{sJ}, 15'), Ins(f's_cselect_b32 s{sSt}, {OOB}, s{sSt}')]
    PK = [[20, 21, 22, 23], [24, 25, 26, 27]]; tq = [28, 29]
    for T in range(4):
        for q2 in range(2):
            pk = PK[q2]
            for p in range(4):
                ar = A1 + 16 * T + 8 * q2 + 2 * p
                ops += [Ins(f'v_accvgpr_read_b32 v{tq[0]}, a{ar}'), Ins(f'v_accvgpr_read_b32 v{tq[1]}, a{ar + 1}'),
                        Ins(f'v_mul_f32 v{tq[0]}, s{sQS}, v{tq[0]}'), Ins(f'v_mul_f32 v{tq[1]}, s{sQS}, v{tq[1]}'),
                        Ins(f'v_cvt_pk_bf16_f32 v{pk[p]}, v{tq[0]}, v{tq[1]}')]
            ops += [Ins(f'buffer_store_dwordx4 v[{pk[0]}:{pk[3]}], v{vSt}, {srd(S_WS)}, s{sSt} offen sc1', tag='qst'), Ins(f's_add_u32 s{sSt}, s{sSt}, 4096')]
    gq_end = spread(ops, G2 + 1, 4)

    def flag_store(base, soff, tagwait):
        return [WaitTag(tagwait), Ins(f's_add_u32 s{sT0}, {soff}, {base}'), Ins('s_mov_b64 exec, 1'),
                Ins(f'buffer_store_dword v{vOne}, v{vZero}, {srd(S_WS)}, s{sT0} offen sc1'), Ins('s_mov_b64 exec, -1')]
    vOne, vZero = 18, 19
    fil[G2] += [Ins(f'v_mov_b32 v{vOne}, 1'), Ins(f'v_mov_b32 v{vZero}, 0')]
    gf1 = first_g[opt.get('f1_step', 16)] + 2
    assert gf1 > gq_end
    mem[gf1] += flag_store(WS_F1, 's2', 'qst')

    vPl = [28, 29, 30]
    gd = max(first_g[14], gq_end + 2)
    ld_dbg = f'buffer_load_dword v{vPl[0]}, v{vFa}, {srd(S_DBG)}, 0 offen sc1'
    fil[gd - 1].append(Ins(f'v_lshlrev_b32 v{vFa}, 2, v{vL}'))
    mem[gd].append(Ins(ld_dbg))
    gd2 = gd + 12
    fil[gd2] += g.poll_check([ld_dbg], [f'v_cmp_ne_u32 vcc, 0x01010101, v{vPl[0]}'])
    vW0, vW1 = 2, 3
    vH = [4, 5, 20, 21]
    ops = [Ins(f's_lshr_b32 s{sT0}, s{sJ}, 3'), Ins(f's_lshl_b32 s{sT0}, s{sT0}, 2'), Ins(f's_and_b32 s{sT1}, s{sJ}, 3'),
           Ins(f's_add_u32 s7, s{sT0}, s{sT1}'),
           Ins(f's_bfe_u32 s8, s{sJ}, 0x10002'),
           Ins(f's_mul_i32 s{sWb}, s7, 5120'), Ins(f's_add_u32 s{sWb}, s{sWb}, {WS_WT}'),
           Ins(f's_mul_i32 s{sT0}, s{sW}, {12 * 40960}'), Ins(f's_add_u32 s9, s{sWb}, s{sT0}'),
           Ins(f's_mul_i32 s{sT0}, s{sW}, {5 * 40960}'), Ins(f's_add_u32 s10, s{sWb}, s{sT0}'), Ins(f's_add_u32 s10, s10, {48 * 40960}'),
           Ins(f's_lshl_b32 s{sT0}, s{sI}, 1'), Ins(f's_add_u32 s11, s{sT0}, s8'),
           Ins(f's_mul_i32 s{sHb}, s11, {H_BLK}'), Ins(f's_mul_i32 s{sT0}, s{sW}, {48 * 1024}'), Ins(f's_add_u32 s{sHb}, s{sHb}, s{sT0}'), Ins(f's_add_u32 s{sHb}, s{sHb}, {WS_H}'),
           Ins(f's_mul_i32 s{sOb}, s11, {O_BLK}'), Ins(f's_mul_i32 s{sT0}, s{sW}, {20 * 1024}'), Ins(f's_add_u32 s{sOb}, s{sOb}, s{sT0}'), Ins(f's_add_u32 s{sOb}, s{sOb}, {WS_O}')]
    for k, o in enumerate(ops): mem[gd + 1 + k // 2].append(o)
    fil[gd + 1] += [Ins(f'v_lshlrev_b32 v{vW0}, 4, v{vL}'), Ins(f'v_add_u32 v{vW1}, 4096, v{vW0}')]
    KS_ORDER = [0, 1, 4, 5, 6, 7, 10, 11, 2, 3, 8, 9]
    WD_A = [0, 20, 40] + [124 + 20 * k for k in range(6)] + [64, 84, 104]
    def w_loads(sbase, ks, abase, c='a'):
        r = [Ins(f's_add_u32 s{sPf}, {sbase}, {ks * 40960}')]
        for nt in range(5):
            r.append(Ins(f'buffer_load_dwordx4 {vr(c, abase + 4 * nt, 4)}, v{vW1 if nt == 4 else vW0}, {srd(S_WS)}, s{sPf} offen offset:{(nt & 3) * 1024} sc1'))
        return r
    pos = max(gd2 + 1, first_g[16] + 4)
    pf_gap = opt.get('pf_gap', 1)
    NPF1 = opt.get('npf1', 9)
    gk = first_g[opt.get('kv_step', 20)]
    wd_done = 0
    for p in range(NPF1):
        l = w_loads('s9', KS_ORDER[p], WD_A[p])
        if pos + 5 * pf_gap >= gk - 14: break
        mem[pos].append(l[0])
        for x in l[1:]:
            mem[pos].append(x); pos += pf_gap
        wd_done += 1

    ops = []
    for b in range(3):
        ops += [Ins(f's_sub_u32 s{sT0}, s{sI}, {2 - b}'), Ins(f's_max_i32 s{sT0}, s{sT0}, 0'), Ins(f's_lshl_b32 s{12 + b}, s{sT0}, 8'),
                Ins(f's_mul_i32 s{sBlk + b}, s{sT0}, {QKV_BLK}')]
    for k, o in enumerate(ops): mem[gk - 20 + k // 2].append(o)
    ld_f1 = [f'buffer_load_dword v{vPl[b]}, v{vFa}, {srd(S_WS)}, s{12 + b} offen sc1' for b in range(3)]
    for b in range(3): mem[gk - 13 + b].append(Ins(ld_f1[b]))
    vKV = 6
    ops = [Ins(f's_lshr_b32 s{sT0}, s{sW}, 1'), Ins(f's_and_b32 s{sT1}, s{sW}, 1'),
           Ins(f's_mul_i32 s{sT2}, s{sT0}, {80 * 2048}'), Ins(f's_mul_i32 s{sT3}, s{sJ}, {5 * 2048}'),
           Ins(f's_add_u32 s15, s{sT3}, {WS_QKV}'),
           Ins(f's_add_u32 s{sT2}, s{sT2}, s15'), Ins(f's_lshl_b32 s{sT1}, s{sT1}, 10'), Ins(f's_add_u32 s{sT2}, s{sT2}, s{sT1}'),
           Ins(f's_add_u32 s{sT2}, s{sT2}, {80 * 2048}'),
           Ins(f's_mul_i32 s16, s{sT0}, {6400 - 6144}'), Ins(f's_add_u32 s16, s16, 6144'),
           Ins(f's_lshl_b32 s17, s{sT0}, 6'),
           Ins(f's_mul_i32 s{sKV}, s{sT0}, {V_BASE - K_BASE}'), Ins(f's_add_u32 s{sKV}, s{sKV}, s{sT1}'), Ins(f's_add_u32 s{sKV}, s{sKV}, {K_BASE}')]
    for k, o in enumerate(ops): mem[gk - 10 + k // 2].append(o)
    fil[gk - 1].append(Ins(f'v_add_u32 v{vKV}, s{sT2}, v{vW0}'))
    fil[gk] += g.poll_check(ld_f1, [f'v_and_b32 v{vPl[0]}, v{vPl[0]}, v{vPl[1]}', f'v_and_b32 v{vPl[0]}, v{vPl[0]}, v{vPl[2]}', f'v_cmp_ne_u32 vcc, 1, v{vPl[0]}'])
    pos = gk + 1
    for o in range(5):
        mem[pos] += [Ins(f's_mul_i32 s18, s16, {o}'), Ins(f's_mul_i32 s{sT0}, s17, {V_CLASS[o]}'), Ins(f's_add_u32 s18, s18, s{sT0}'), Ins(f's_add_u32 s18, s18, s{sKV}')]
        for b in (2, 1, 0):
            mem[pos] += [Ins(f's_add_u32 m0, s18, {b * 2048}'), Ins(f's_add_u32 s{sT0}, s{sBlk + b}, {o * 2048}'),
                         Ins(f'buffer_load_dwordx4 v{vKV}, {srd(S_WS)}, s{sT0} offen sc1 lds', tag='kv')]
            pos += 1
    QF1 = [96, 100]; QRAW = 104; QF2 = [108, 112]
    assert pos >= G3 + 10
    mem[pos] += [Ins(f's_lshl_b32 s{sT0}, s{sW}, 9'), Ins(f's_add_u32 s{sT0}, s{sT0}, s15'), Ins(f's_add_u32 s{sT0}, s{sT0}, s{sBlk + 2}'),
                 Ins(f'buffer_load_dwordx4 {vr("v", QF1[0], 4)}, v{vSt}, {srd(S_WS)}, s{sT0} offen sc1'),
                 Ins(f's_add_u32 s{sT0}, s{sT0}, 4096')]
    mem[pos + 1] += [Ins(f'buffer_load_dwordx4 {vr("v", QRAW, 4)}, v{vSt}, {srd(S_WS)}, s{sT0} offen sc1')]
    mem[pos + 2] += [Ins(f'buffer_load_dwordx4 {vr("v", QF1[1], 4)}, v{vSt}, {srd(S_WS)}, s{sT0} offen offset:2048 sc1')]
    pos += 3
    for p in range(wd_done, NPF1):
        l = w_loads('s9', KS_ORDER[p], WD_A[p])
        mem[pos].append(l[0])
        for x in l[1:]:
            mem[min(pos, NG)].append(x); pos += pf_gap
        wd_done += 1

    vHs = 7
    def silu_ops(gr, ur, pk, tmp, from_agpr):
        r = []
        for p in range(4):
            gs, us, ts = [], [], []
            for k in range(2):
                if from_agpr:
                    gv, uv = tmp[2 + 2 * k], tmp[3 + 2 * k]
                    r += [Ins(f'v_accvgpr_read_b32 v{gv}, a{gr + 2 * p + k}'), Ins(f'v_accvgpr_read_b32 v{uv}, a{ur + 2 * p + k}')]
                else:
                    gv, uv = gr + 2 * p + k, ur + 2 * p + k
                gs.append(gv); us.append(uv); ts.append(tmp[k])
            for k in range(2): r.append(Ins(f'v_mul_f32 v{ts[k]}, {hex(f2u(-LOG2E))}, v{gs[k]}'))
            for k in range(2): r.append(Ins(f'v_exp_f32 v{ts[k]}, v{ts[k]}'))
            for k in range(2): r.append(Ins(f'v_mul_f32 v{us[k]}, v{gs[k]}, v{us[k]}'))
            for k in range(2): r.append(Ins(f'v_add_f32 v{ts[k]}, 1.0, v{ts[k]}'))
            for k in range(2): r.append(Ins(f'v_rcp_f32 v{ts[k]}, v{ts[k]}'))
            for k in range(2): r.append(Ins(f'v_mul_f32 v{us[k]}, v{us[k]}, v{ts[k]}'))
            r.append(Ins(f'v_cvt_pk_bf16_f32 v{pk + p}, v{us[0]}, v{us[1]}'))
        return r
    ops = [Ins(f'v_and_b32 v{vT[0]}, 31, v{vL}'), Ins(f'v_lshrrev_b32 v{vT[1]}, 5, v{vL}'), Ins(f'v_lshlrev_b32 v{vT[0]}, 4, v{vT[0]}'),
           Ins(f'v_lshl_add_u32 v{vHs}, v{vT[1]}, 10, v{vT[0]}'), Ins(f's_and_b32 s19, s{sW}, 1'), Ins(f's_lshl_b32 s19, s19, 9'), Ins(f'v_add_u32 v{vHs}, s19, v{vHs}')]
    spread(ops, G3 - 12, 2)
    ops = []
    for T in range(4):
        pk = ACC2 + 16 * T
        ops += silu_ops(ACC2 + 16 * T, ACC2 + 16 * T + 8, pk, [vT[0], vT[1]], False)
        if T == 2: ops.append(Ins('s_add_u32 s4, s4, 4096'))
        ops.append(Ins(f'buffer_store_dwordx4 {vr("v", pk, 4)}, v{vHs}, {srd(S_WS)}, s4 offen offset:{(T & 1) * 2048} sc1', tag='ha'))
    ge = spread(ops, G3 + 2, opt.get('silu_per', 4))
    print('QKV epilogue ends at group', gq_end, ' GU-A epilogue ends at group', ge, 'of', NG, ' Wd prefetched', wd_done, file=sys.stderr)

    for gi in range(NG):
        if gi in (G2, G3): g.add(g.stamp('pass'))
        g.add(mfma_of(gi))
        if gi + 1 < NG:
            a = RING + 4 * ((gi + 1) % NF)
            g.add(WaitRegs(rlist('a', a, 4)))
        g.add(pre[gi])
        fix = []
        if gi + D < NG:
            f0, rd = frag_reads(gi + D)
            g.add(f0); g.add(rd)
        g.add(mem[gi]); g.add(fil[gi])
    g.add(mem[NG]); g.add(fil[NG])
    g.add(g.stamp('p1_end'))

    CT = 116
    e(f's_lshl_b32 s{sT0}, s{sI}, 7')
    e(f's_sub_u32 s{sT0}, 256, s{sT0}')
    e(f'v_cmp_gt_i32 vcc, s{sT0}, v0')
    e(f'v_mov_b32 v{CT + 4}, 0x3f800000')
    e(f'v_mov_b32 v{CT + 1}, 0x3f80')
    e(f'v_mov_b32 v{CT + 2}, {hex(0x3f800000 | BIG)}')
    e(f'v_cndmask_b32 v{CT}, v{CT + 4}, v{CT + 2}, vcc')
    e(f'v_mov_b32 v{CT + 3}, v{CT + 1}')
    e(f'v_mov_b32 v{CT + 2}, v{CT}')
    e(f'v_mov_b32 v{CT + 5}, v{CT + 1}')
    e(f'v_mov_b32 v{CT + 6}, v{CT + 4}')
    e(f'v_mov_b32 v{CT + 7}, v{CT + 1}')
    e(f'v_lshlrev_b32 v{vT[2]}, 4, v0')
    e(f'v_and_b32 v{vT[3]}, 2047, v{vT[2]}')
    e(f'ds_write_b128 v{vT[2]}, {vr("v", CT, 4)} offset:{C_BASE}', tag='cst')
    e(f'ds_write_b128 v{vT[3]}, {vr("v", CT + 4, 4)} offset:{C_BASE + 4096}', tag='cst')
    for T in range(2):
        pk = 124 + 4 * T
        g.add(silu_ops(A3 + 16 * T, A3 + 16 * T + 8, pk, vT[0:2] + vT[4:8], True))
        e(f'buffer_store_dwordx4 {vr("v", pk, 4)}, v{vHs}, {srd(S_WS)}, s5 offen offset:{T * 2048} sc1', tag='hb')
        if T == 0:
            g.add(flag_store(WS_F2, 's3', 'ha'))
    for p in range(wd_done, 12):
        g.add(w_loads('s9', KS_ORDER[p], WD_A[p]))
    if opt.get('stop') == 'p1':
        g.add(WaitAll())
        return finish(g, opt)

    SB = [32, 48, 64]; PB = [80, 88]; OA = [132, 148]; MK = [164, 180]
    KF = [[196, 200, 204], [208, 212, 216]]
    VF = [220, 228]
    vK1, vK2, vV = 8, 9, [10, 11]
    vM = [14, 15]
    e(f'v_and_b32 v{vT[0]}, 31, v{vL}')
    e(f'v_lshrrev_b32 v{vT[1]}, 5, v{vL}')
    e(f's_lshl_b32 s{sT0}, s{sW}, 9')
    e(f'v_lshl_add_u32 v{vT[2]}, v{vT[0]}, 4, s{sT0}')
    e(f'v_mul_u32_u24 v{vT[3]}, 6144, v{vT[1]}')
    e(f'v_add3_u32 v{vK1}, v{vT[2]}, v{vT[3]}, s{sT0}') if False else None
    e(f'v_add_u32 v{vK1}, v{vT[2]}, v{vT[3]}')
    e(f'v_add_u32 v{vK1}, {K_BASE}, v{vK1}')
    e(f'v_mov_b32 v{vT[3]}, {K_BASE + 2 * 6144}')
    e(f'v_mov_b32 v{vT[4]}, {C_BASE}')
    e(f'v_cndmask_b32 v{vT[3]}, v{vT[3]}, v{vT[4]}, s[{sHi}:{sHi + 1}]')
    e(f'v_add_u32 v{vK2}, v{vT[2]}, v{vT[3]}')
    e(f'v_bfe_u32 v{vT[2]}, v{vL}, 2, 2')
    e(f'v_lshl_add_u32 v{vT[2]}, v{vT[1]}, 2, v{vT[2]}')
    e(f'v_lshl_add_u32 v{vT[2]}, v{vT[2]}, 4, s{sT0}')
    def slotmask(slots):
        m = 0
        for l in range(64):
            if 4 * ((l >> 4) & 1) + (l & 3) in slots: m |= 1 << l
        return m
    for hd in range(2):
        oa, ob = (0, 1) if hd == 0 else (3, 4)
        table = [v_oct(oa), v_oct(ob), v_oct(oa) + 8, v_oct(ob) + 8, v_oct(2) + 8 * hd]
        e(f'v_mov_b32 v{vV[hd]}, {C_BASE}')
        for s_, val in enumerate(table):
            m = slotmask([s_]); assert m >> 32 == m & 0xffffffff
            e(f's_mov_b32 exec_lo, {hex(m >> 32)}'); e(f's_mov_b32 exec_hi, {hex(m >> 32)}')
            e(f'v_mov_b32 v{vV[hd]}, {val}')
        e('s_mov_b64 exec, -1')
        e(f'v_add_u32 v{vV[hd]}, v{vV[hd]}, v{vT[2]}')
    e(f'v_mov_b32 v{vT[3]}, {hex(BIG << 16)}')
    for r in range(16):
        c = (r & 3) + 8 * (r >> 2)
        lo = (0xffffffff << c) & 0xffffffff; hi = (0xffffffff << (c + 4)) & 0xffffffff
        sm = sMk + 2 * (r & 1)
        e(f's_mov_b32 s{sm}, {hex(lo)}'); e(f's_mov_b32 s{sm + 1}, {hex(hi)}')
        e(f'v_cndmask_b32 v{MK[0] + r}, 0, v{vT[3]}, s[{sm}:{sm + 1}]')
        e(f'v_cndmask_b32 v{MK[1] + r}, v{vT[3]}, 0, s[{sm}:{sm + 1}]')
    hi = f's[{sHi}:{sHi + 1}]'
    e(f'v_mov_b32 v{vT[4]}, 0x3f80')
    e(f'v_cndmask_b32 v{QF2[0]}, v{QRAW}, v{vT[4]}, {hi}')
    e(f'v_cndmask_b32 v{QF2[0] + 1}, v{QRAW + 1}, 0, {hi}')
    e(f'v_mov_b32 v{QF2[0] + 2}, 0'); e(f'v_mov_b32 v{QF2[0] + 3}, 0')
    e(f'v_cndmask_b32 v{QF2[1]}, 0, v{vT[4]}, {hi}')
    e(f'v_mov_b32 v{QF2[1] + 1}, 0')
    e(f'v_cndmask_b32 v{QF2[1] + 2}, v{QRAW + 2}, 0, {hi}')
    e(f'v_cndmask_b32 v{QF2[1] + 3}, v{QRAW + 3}, 0, {hi}')
    g.add(WaitTag(['kv', 'cst']))
    e('s_barrier')
    g.add(g.stamp('att_start'))

    def k_reads(t):
        k = KF[t & 1]
        return [Ins(f'ds_read_b128 {vr("v", k[0], 4)}, v{vK1} offset:{512 * t}'), Ins(f'ds_read_b128 {vr("v", k[2], 4)}, v{vK2} offset:{512 * t}'),
                Ins(f'ds_read_b128 {vr("v", k[1], 4)}, v{vK1} offset:{512 * t + 3 * 6144}')]
    def qk(u):
        t, hd = u >> 1, u & 1
        s = vr('v', SB[u % 3], 16); k = KF[t & 1]
        c = vr('v', MK[0], 16) if t == 0 else vr('v', MK[1], 16) if t == 8 else '0'
        return [Ins(f'v_mfma_f32_32x32x16_bf16 {s}, {vr("v", k[hd], 4)}, {vr("v", QF1[hd], 4)}, {c}'),
                Ins(f'v_mfma_f32_32x32x16_bf16 {s}, {vr("v", k[2], 4)}, {vr("v", QF2[hd], 4)}, {s}')]
    def v_reads(u):
        t, hd = u >> 1, u & 1
        return [Ins(f'ds_read_b64_tr_b16 {vr("v", VF[u & 1] + 2 * x, 2)}, v{vV[hd]} offset:{512 * t + 128 * x}') for x in range(4)]
    def pv(u):
        t, hd = u >> 1, u & 1
        o = vr('v', OA[hd], 16)
        return [Ins(f'v_mfma_f32_32x32x16_bf16 {o}, {vr("v", VF[u & 1] + 4 * m, 4)}, {vr("v", PB[u & 1] + 4 * m, 4)}, {o if (t or m) else 0}') for m in range(2)]

    g.add(k_reads(0))
    for u in range(18 + 2):
        t = u >> 1
        mx = []
        if u >= 2:
            w_ = u - 2; s = SB[w_ % 3]; m = vM[w_ & 1]
            for p in range(8):
                mx.append(Ins(f'v_max3_f32 v{m}, v{s + 2 * p}, v{s + 2 * p + 1}, v{m}') if (w_ >= 2 or p) else Ins(f'v_max_f32 v{m}, v{s}, v{s + 1}'))
        if u < 18:
            q = qk(u)
            g.add(q[0])
            if (u & 1) == 0: g.add(k_reads(t + 1) if t < 8 else [])
            g.add(mx[:4]); g.add(q[1]); g.add(mx[4:])
        else:
            if u == 18: g.add(k_reads(0))
            g.add(mx)
        if u == 6: g.add(flag_store(WS_F3, 's3', 'hb'))
    for hd in range(2):
        m, t0, t1 = vM[hd], vT[2 * hd], vT[2 * hd + 1]
        e(f'v_mov_b32 v{t0}, v{m}')
        e(f'v_permlane32_swap_b32 v{m}, v{t0}')
        e(f'v_max_f32 v{m}, v{m}, v{t0}')
        e(f'v_xor_b32 v{m}, 0x80000000, v{m}')
        e(f'v_and_b32 v{t0}, s{sMask}, v{m}')
        e(f'v_sub_f32 v{t1}, v{m}, v{t0}')
        e(f'v_or_b32 v{t0}, 0x3f80, v{t0}')
        e(f'v_cvt_pk_bf16_f32 v{t1}, v{t1}, 0')
        e(f'v_cndmask_b32 v{QF2[hd]}, v{QF2[hd]}, v{t0}, {hi}')
        e(f'v_cndmask_b32 v{QF2[hd] + 1}, v{QF2[hd] + 1}, v{t1}, {hi}')
    g.add(g.stamp('att_max'))

    vH = [4, 5, 16, 17]
    vF = 13
    e(f'v_and_b32 v{vT[0]}, 15, v{vL}')
    e(f'v_lshrrev_b32 v{vT[1]}, 4, v{vL}')
    e(f'v_lshlrev_b32 v{vT[0]}, 4, v{vT[0]}')
    e(f'v_lshl_add_u32 v{vT[0]}, v{vT[1]}, 10, v{vT[0]}')
    e(f's_lshl_b32 s{sT0}, s{sW}, 8')
    e(f'v_add_u32 v{vH[0]}, s{sT0}, v{vT[0]}')
    for la in range(1, 4): e(f'v_xor_b32 v{vH[la]}, {la << 8}, v{vH[0]}')
    e(f's_lshl_b32 s{sT0}, s{sI}, 2'); e(f's_add_u32 s{sT0}, s{sT0}, s{sW}'); e(f's_lshl_b32 s{sT0}, s{sT0}, 1')
    e(f's_add_u32 s{sT0}, s{sT0}, s8'); e(f's_lshl_b32 s{sT0}, s{sT0}, 7')
    e(f'v_and_b32 v{vT[0]}, 7, v{vL}')
    e(f'v_lshl_add_u32 v{vF}, v{vT[0]}, 2, s{sT0}')
    e(f's_mov_b32 s12, {WS_F2}'); e(f's_mov_b32 s13, {WS_F3}'); e(f's_mov_b32 s14, {WS_F4}')
    def ld_flag(k): return f'buffer_load_dword v{vPl[0]}, v{vF}, {srd(S_WS)}, s{12 + k} offen sc1'
    def chk_flag(k): return g.poll_check([ld_flag(k)], [f'v_cmp_ne_u32 vcc, 1, v{vPl[0]}'])
    def act_loads(sbase, ks, base, c='v'):
        return [Ins(f's_add_u32 s{sPf}, s{sbase}, {ks * 4096}')] + \
               [Ins(f'buffer_load_dwordx4 {vr(c, base + 4 * la, 4)}, v{vH[la]}, {srd(S_WS)}, s{sPf} offen sc1') for la in range(4)]

    HB = [236, 116]
    side = {u: [] for u in range(20)}
    side[0] = [Ins(ld_flag(0))]
    side[4] = act_loads(sHb, KS_ORDER[0], HB[0])
    side[5] = act_loads(sHb, KS_ORDER[1], HB[1])
    side[14] = [Ins(ld_flag(1))]
    g.add(qk(0)); g.add(k_reads(1)); g.add(v_reads(0))
    for u in range(18):
        t = u >> 1
        s = SB[u % 3]; p = PB[u & 1]
        ex = [Ins(f'v_exp_f32 v{s + r}, v{s + r}') for r in range(16)]
        cv = [Ins(f'v_cvt_pk_bf16_f32 v{p + r}, v{s + 2 * r}, v{s + 2 * r + 1}') for r in range(8)]
        q = qk(u + 1) if u + 1 < 18 else [None, None]
        pvp = pv(u - 1) if u >= 1 else [None, None]
        if q[0]: g.add(q[0])
        g.add(side[u])
        if u == 3: g.add(chk_flag(0))
        g.add(ex[0:4])
        if q[1]: g.add(q[1])
        if (u & 1) == 0 and 1 <= t < 8: g.add(k_reads(t + 1))
        g.add(ex[4:8])
        if pvp[0]: g.add(pvp[0])
        g.add(ex[8:12]); g.add(cv[0:2])
        if pvp[1]: g.add(pvp[1])
        if u + 1 < 18: g.add(v_reads(u + 1))
        g.add(cv[2:4]); g.add(ex[12:16]); g.add(cv[4:8])
    g.add(pv(17))
    g.add(chk_flag(1))
    FA = 32; SA = 164
    HR = [236, 116, 164, 180, 196, 212]
    for p in range(2, 6): g.add(act_loads(sHb, KS_ORDER[p], HR[p]))
    OP = 112
    for hd in range(2):
        o = OA[hd]
        e(f'v_rcp_f32 v{vT[hd]}, v{o + 13}')
    for hd in range(2):
        o = OA[hd]
        for r in range(12): e(f'v_mul_f32 v{o + r}, v{o + r}, v{vT[hd]}')
        for r in range(4): e(f'v_cvt_pk_bf16_f32 v{o + r}, v{o + 2 * r}, v{o + 2 * r + 1}')
        for r in range(2): e(f'v_cvt_pk_bf16_f32 v{OP + 2 * hd + r}, v{o + 8 + 2 * r}, v{o + 9 + 2 * r}')
        e(f'buffer_store_dwordx4 {vr("v", o, 4)}, v{vHs}, {srd(S_WS)}, s6 offen offset:{3072 * hd} sc1', tag='ost')
    e('s_mov_b32 exec_hi, 0')
    e(f'buffer_store_dwordx4 {vr("v", OP, 4)}, v{vHs}, {srd(S_WS)}, s6 offen offset:2048 sc1', tag='ost')
    e('s_mov_b32 exec_hi, -1')
    g.add(g.stamp('att_end'))
    if opt.get('stop') == 'att':
        g.add(WaitAll())
        return finish(g, opt)

    def mm(acc, wb, hb, first, wc='a', hc='v'):
        r = []
        for nt in range(5):
            for la in range(4):
                a = vr('v', acc + 16 * nt + 4 * la, 4)
                r.append(Ins(f'v_mfma_f32_16x16x32_bf16 {a}, {vr(wc, wb + 4 * nt, 4)}, {vr(hc, hb + 4 * la, 4)}, {0 if first else a}'))
        return r
    def weave(ms, side_, start=0):
        side_ = list(side_)
        for k, m in enumerate(ms):
            g.add(m)
            if k >= start and side_:
                g.add(side_.pop(0))
                while side_ and isinstance(side_[0], Ins) and side_[0].kind in ('vld',) and isinstance(g.it[-1], Ins) and g.it[-1].kind == 'salu':
                    g.add(side_.pop(0))
        g.add(side_)
    WO_A = [0, 20, 40, 124, 144]
    OB_A = [164, 180, 196, 212, 228]
    XR = 244
    vXo = 6
    for p in range(12):
        sd = []
        if p >= 1 and p + 5 < 12: sd += act_loads(sHb, KS_ORDER[p + 5], HR[(p + 5) % 6])
        if 1 <= p <= 5: sd += w_loads('s10', p - 1, WO_A[p - 1])
        if p == opt.get('of_step', 3): sd += flag_store(WS_F4, 's3', 'ost')
        if p == 7:
            sd += [Ins(f's_lshl_b32 s{sT0}, s11, 2'), Ins(f's_add_u32 s{sT0}, s{sT0}, s{sW}'), Ins(f's_mul_i32 s{sT0}, s{sT0}, {16 * 1280}'),
                   Ins(f's_mul_i32 s{sT1}, s7, 160'), Ins(f's_add_u32 s{sT0}, s{sT0}, s{sT1}'),
                   Ins(f'v_and_b32 v{vT[0]}, 15, v{vL}'), Ins(f'v_lshrrev_b32 v{vT[1]}, 4, v{vL}'), Ins(f'v_mul_u32_u24 v{vT[0]}, 1280, v{vT[0]}'),
                   Ins(f'v_lshl_add_u32 v{vT[0]}, v{vT[1]}, 3, v{vT[0]}'), Ins(f'v_add_u32 v{vXo}, s{sT0}, v{vT[0]}')]
        if p == 8:
            sd += [Ins(f'buffer_load_dwordx2 {vr("v", XR + 2 * nt, 2)}, v{vXo}, {srd(S_X)}, 0 offen offset:{32 * nt}') for nt in range(5)]
        if p == opt.get('op_step', 9): sd += [Ins(ld_flag(2))]
        weave(mm(FA, WD_A[p], HR[p % 6], p == 0), sd)
    g.add(chk_flag(2))
    for p in range(5): g.add(act_loads(sOb, p, OB_A[p], 'a'))
    g.add(g.stamp('down_end'))
    vRw = [8, 9, 10]; vRr = 11
    for la in range(1, 4):
        e(f's_xor_b32 s{sT0}, s{sW}, {la}'); e(f's_mul_i32 s{sT0}, s{sT0}, 15360'); e(f's_add_u32 s{sT0}, s{sT0}, {(la - 1) * 5120}')
        e(f'v_add_u32 v{vRw[la - 1]}, s{sT0}, v{vW0}')
    e(f's_mul_i32 s{sT0}, s{sW}, 15360')
    e(f'v_add_u32 v{vRr}, s{sT0}, v{vW0}')
    RED0, RED1 = SLOT, 0
    def red_w(acc, base):
        return [Ins(f'ds_write_b128 v{vRw[la - 1]}, {vr("v", acc + 16 * nt + 4 * la, 4)} offset:{base + 1024 * nt}', tag='red') for la in range(1, 4) for nt in range(5)]
    def red_r(acc, base):
        return [Ins(f'ds_read_b128 {vr("v", acc + 16 * nt + 4 * la, 4)}, v{vRr} offset:{base + 5120 * (la - 1) + 1024 * nt}') for nt in range(5) for la in range(1, 4)]
    def red_add(acc):
        r = []
        for nt in range(5):
            for k in range(4):
                a = acc + 16 * nt + k
                r += [Ins(f'v_add_f32 v{a}, v{a}, v{a + 4}'), Ins(f'v_add_f32 v{a + 8}, v{a + 8}, v{a + 12}'), Ins(f'v_add_f32 v{a}, v{a}, v{a + 8}')]
        return r
    g.add(red_w(FA, RED0))
    g.add(WaitTag('red')); e('s_barrier')
    g.add(red_r(FA, RED0))
    fin = red_add(FA)
    for nt in range(5):
        for k in range(4):
            a = FA + 16 * nt + k
            fin += [Ins(f'v_mul_f32 v{a + 4}, {hex(f2u(-LOG2E))}, v{a}')]
        for k in range(4): a = FA + 16 * nt + k; fin += [Ins(f'v_exp_f32 v{a + 4}, v{a + 4}')]
        for k in range(4): a = FA + 16 * nt + k; fin += [Ins(f'v_add_f32 v{a + 4}, 1.0, v{a + 4}')]
        for k in range(4): a = FA + 16 * nt + k; fin += [Ins(f'v_rcp_f32 v{a + 4}, v{a + 4}')]
        for k in range(4): a = FA + 16 * nt + k; fin += [Ins(f'v_mul_f32 v{a}, v{a}, v{a + 4}')]
    g.add(fin)
    for p in range(5):
        g.add(mm(SA, WO_A[p], OB_A[p], p == 0, 'a', 'a'))
    for r in vRw + [vRr]: e(f'v_add_u32 v{r}, {6 * SLOT}, v{r}')
    g.add(red_w(SA, RED1))
    g.add(WaitTag('red')); e('s_barrier')
    g.add(red_r(SA, RED1))
    g.add(red_add(SA))
    for nt in range(5):
        s = SA + 16 * nt; f = FA + 16 * nt; x = XR + 2 * nt
        for k in range(2):
            e(f'v_lshlrev_b32 v{s + 4 + 2 * k}, 16, v{x + k}')
            e(f'v_and_b32 v{s + 5 + 2 * k}, s{sMask}, v{x + k}')
        for k in range(4): e(f'v_fma_f32 v{s + k}, v{s + k}, v{f + k}, v{s + 4 + k}')
        for k in range(2): e(f'v_cvt_pk_bf16_f32 v{s + 8 + k}, v{s + 2 * k}, v{s + 2 * k + 1}')
        e(f'buffer_store_dwordx2 {vr("v", s + 8, 2)}, v{vXo}, {srd(S_OUT)}, 0 offen offset:{32 * nt}')
    return finish(g, opt)


def finish(g, opt):
    e = g.e
    if opt.get('prof'):
        g.add(WaitAll())
        e('s_memtime s[12:13]')
        e('s_memrealtime s[14:15]')
        g.add(WaitAll())
        e('v_mov_b32 v20, 0')
        for k in range(g.nstamp): e(f'v_writelane_b32 v20, s{sStamp + 2 * k}, {k}')
        e(f'v_writelane_b32 v20, s12, {g.nstamp}')
        e(f'v_writelane_b32 v20, s14, 15')
        e(f's_lshl_b32 s{sT0}, s{sCU}, 10')
        e(f's_add_u32 s{sT0}, s{sT0}, {WS_STAMP}')
        e('v_lshlrev_b32 v21, 2, v0')
        e(f'buffer_store_dword v20, v21, {srd(S_WS)}, s{sT0} offen')
        opt['stamps'].append('end')
    g.add(Label('L_end'))
    e('s_endpgm')
    items = insert_waits(g.it)
    rep = []
    items = insert_nops(items, rep)
    if opt.get('verbose'):
        for x in rep: print('nop', x, file=sys.stderr)
    print('instructions', sum(isinstance(x, Ins) for x in items), 'nop states', sum(x[0] for x in rep), file=sys.stderr)
    head = open('recurrent_scan__sliding_block__swiglu_ffn__prompt.s.ref').read().split('; Override launch')[0]
    s = head + '; @launch grid=(256,1,1) block=(256,1,1) lds=163840\n'
    s += f'.amdgcn_target "amdgcn-amd-amdhsa--gfx950"\n.text\n.globl {KNAME}\n.p2align 8\n.type {KNAME},@function\n{KNAME}:\n'
    s += render(items)
    s += '\n'.join(g.tail) + '\n'
    s += f'''.section .rodata,"a"
.p2align 6
.amdhsa_kernel {KNAME}
  .amdhsa_next_free_vgpr 512
  .amdhsa_next_free_sgpr 102
  .amdhsa_accum_offset 256
  .amdhsa_group_segment_fixed_size 0
  .amdhsa_kernarg_size 80
  .amdhsa_user_sgpr_count 2
  .amdhsa_user_sgpr_kernarg_segment_ptr 1
  .amdhsa_system_sgpr_workgroup_id_x 1
.end_amdhsa_kernel
'''
    return s


if __name__ == '__main__':
    opt = {}
    outp = sys.argv[1]
    for a in sys.argv[2:]:
        k, _, v = a.partition('=')
        opt[k] = int(v) if v.lstrip('-').isdigit() else (v or 1)
    s = build(opt)
    open(outp, 'w').write(s)
    if opt.get('prof'):
        open(outp + '.stamps', 'w').write(' '.join(opt['stamps']))
```

```python
import sys, math, struct
from asmir import *

KNAME = 'recurrent_scan__sliding_block__swiglu_ffn__prompt_kernel'

WS_F1 = 0x0000
WS_F2 = 0x10000
WS_F3 = 0x20000
WS_F4 = 0x30000
WS_QKV = 1 << 20
QKV_BLK = 240 * 2048
WS_H = 9 << 20
H_BLK = 192 * 1024
WS_O = 16 << 20
O_BLK = 80 * 1024
WS_WT = 19 << 20
WS_STAMP = 24 << 20
WS_BYTES = 32 << 20
OOB = 0x7ff00000

S_X, S_WQ, S_GU, S_RT, S_OUT, S_WS, S_DBG = 24, 28, 32, 36, 40, 44, 48
sI, sJ, sW, sCU = 52, 53, 54, 55
sT0, sT1, sT2, sT3 = 56, 57, 58, 59
sLdsW = 60
sOff = 61
sMask = 62
sQS = 63
sSt = 64
sHi = 66
sBlk = 68
sPf = 71
sMk = 72
sOnes = 76
sSpin = 77
sHb, sOb, sWb = 78, 79, 80
sKV = 81
sStamp = 82

def srd(n): return f's[{n}:{n + 3}]'

SLOT = 16384
K_BASE = 6 * SLOT
V_BASE = K_BASE + 5 * 6144
V_CLASS = [0, 1, 2, 0, 1]
def v_oct(o): return V_BASE + o * 6400 + 64 * V_CLASS[o]
C_BASE = 192
BIG = 0xF180

def f2u(x): return struct.unpack('<I', struct.pack('<f', x))[0]
LOG2E = 1.4426950408889634


class G:
    def __init__(self, opt):
        self.o = opt
        self.it = []
        self.tail = []
        self.nstamp = 0
        self.npoll = 0

    def e(self, text, tag=None, extra_rd=()):
        i = Ins(text, tag, extra_rd); self.it.append(i); return i

    def add(self, x):
        if isinstance(x, str): self.e(x)
        elif isinstance(x, (list, tuple)):
            for y in x: self.add(y)
        else: self.it.append(x)

    def stamp(self, name):
        if self.o.get('dly'):
            k = self.nstamp; self.nstamp += 1
            a, b = [int(x) for x in str(self.o['dly']).split('_')]
            if k == a: return [Ins(f's_memrealtime s[{sStamp}:{sStamp + 1}]')]
            if k == b: return [Ins(f's_memrealtime s[{sStamp + 2}:{sStamp + 3}]')]
            return []
        if not self.o.get('prof'): return []
        k = self.nstamp; self.nstamp += 1
        assert k < 10
        self.o.setdefault('stamps', []).append(name)
        return [Ins(f's_memtime s[{sStamp + 2 * k}:{sStamp + 2 * k + 1}]')]

    def poll_check(self, loads, cmp_lines):
        k = self.npoll; self.npoll += 1
        seq = [Ins(x) for x in cmp_lines] + [Ins(f's_cbranch_vccnz L_retry{k}'), Label(f'L_cont{k}')]
        t = [f'L_retry{k}:', f'    s_mov_b32 s{sSpin}, 0x40000', f'L_spin{k}:', '    s_sleep 2']
        t += ['    ' + l for l in loads] + ['    s_waitcnt vmcnt(0)']
        for x in cmp_lines: t += ['    ' + x, '    s_nop 1']
        t += [f'    s_sub_u32 s{sSpin}, s{sSpin}, 1', f'    s_cbranch_scc1 L_cont{k}', f'    s_cbranch_vccnz L_spin{k}', f'    s_branch L_cont{k}']
        self.tail += t
        return seq


def build(opt):
    g = G(opt)
    e = g.e
    XN = 96
    ACC2 = 32
    A1, A3, RING, RTA = 0, 64, 96, 124
    D = 6; NF = 7
    vL = 1
    vX = [32, 33, 34, 35]
    vQ = [36, 37, 38, 39]
    vRT = [40, 41, 42, 43]
    vXR = [44, 45, 46, 47]
    vRTr, vRTs = 48, 49
    vS = [50, 51, 52, 53]
    vN = [54, 55, 56, 57]
    vGA = [2, 3, 4, 5]; vGB = [6, 7, 8, 9]
    vTq = [10, 11, 12, 13]; vTa = [14, 15, 16, 17]
    vTb = [10, 11]
    vR, vNB = 18, 19
    vT = list(range(20, 32))

    e('s_cmp_ge_u32 s2, 256')
    e('s_cbranch_scc1 L_end')
    g.add(g.stamp('entry'))
    e('s_load_dwordx16 s[4:19], s[0:1], 0')
    e('s_load_dwordx4 s[20:23], s[0:1], 64')
    e(f'v_and_b32 v{vL}, 63, v0')
    e(f'v_lshrrev_b32 v{vT[0]}, 6, v0')
    e(f's_and_b32 s{sT0}, s2, 7')
    e(f's_lshr_b32 s{sT1}, s2, 3')
    e(f'v_readfirstlane_b32 s{sW}, v{vT[0]}')
    e(f's_and_b32 s{sI}, s{sT0}, 1')
    e(f's_lshl_b32 s{sI}, s{sI}, 3')
    e(f's_lshr_b32 s{sT2}, s{sT1}, 2')
    e(f's_add_u32 s{sI}, s{sI}, s{sT2}')
    e(f's_lshr_b32 s{sJ}, s{sT0}, 1')
    e(f's_lshl_b32 s{sJ}, s{sJ}, 2')
    e(f's_and_b32 s{sT1}, s{sT1}, 3')
    e(f's_add_u32 s{sJ}, s{sJ}, s{sT1}')
    e(f's_lshl_b32 s{sCU}, s{sI}, 4')
    e(f's_add_u32 s{sCU}, s{sCU}, s{sJ}')
    e(f's_lshl_b32 s{sLdsW}, s{sW}, 12')
    e(f's_lshl_b32 s{sT0}, s{sI}, 2')
    e(f's_add_u32 s{sT0}, s{sT0}, s{sW}')
    e(f's_mul_i32 s{sT0}, s{sT0}, {32 * 1280}')
    e(f'v_lshrrev_b32 v{vT[0]}, 3, v{vL}')
    e(f'v_mul_u32_u24 v{vT[0]}, 1280, v{vT[0]}')
    e(f'v_add_u32 v{vT[0]}, s{sT0}, v{vT[0]}')
    e(f'v_lshrrev_b32 v{vT[1]}, 4, v{vL}')
    e(f'v_and_b32 v{vT[2]}, 7, v{vL}')
    e(f'v_xor_b32 v{vT[2]}, v{vT[1]}, v{vT[2]}')
    e(f'v_lshl_add_u32 v{vX[0]}, v{vT[2]}, 4, v{vT[0]}')
    e(f'v_xor_b32 v{vX[1]}, 64, v{vX[0]}')
    e(f'v_add_u32 v{vX[2]}, {2 * (8 * 1280 - 1024)}, v{vX[0]}')
    e(f'v_add_u32 v{vX[3]}, {3 * (8 * 1280 - 1024)}, v{vX[1]}')
    e(f'v_add_u32 v{vX[1]}, {8 * 1280 - 1024}, v{vX[1]}')

    def mk_srd(n, p, size):
        e(f's_mov_b32 s{n}, s{p}'); e(f's_and_b32 s{n + 1}, s{p + 1}, 0xffff')
        e(f's_mov_b32 s{n + 2}, {size}'); e(f's_mov_b32 s{n + 3}, 0x20000')
    mk_srd(S_X, 4, 2048 * 1280)

    ent = [('x', s) for s in range(10)] + [('q', 0), ('q', 1), ('q', 2), ('rt', 0)] + [('q', s) for s in range(3, 10)] \
        + [('ga', s) for s in range(10)] + [('gb', s) for s in range(5)]
    eidx = {k: n for n, k in enumerate(ent)}
    def slot_of(k): return (eidx[k] % 10) * SLOT

    def dma_entry(n):
        kind, s = ent[n]
        so, vo, sr = {'x': (128 * s, vX, S_X), 'q': (64 * 3840 * s, vQ, S_WQ), 'rt': (0, vRT, S_RT),
                      'ga': (64 * 3072 * s, vGA, S_GU), 'gb': (128 * 3072 * s, vGB, S_GU)}[kind]
        pre = [Ins(f's_add_u32 m0, s{sLdsW}, {(n % 10) * SLOT}'), Ins(f's_mov_b32 s{sOff}, {so}')]
        return pre, [Ins(f'buffer_load_dwordx4 v{vo[u]}, {srd(sr)}, s{sOff} offen offset:{1024 * u} lds', tag=f'e{n}') for u in range(4)]

    NI = opt.get('ni', 10)
    for n in range(NI):
        pre, d = dma_entry(n); g.add(pre); g.add(d)

    mk_srd(S_WQ, 6, 640 * 3840)
    mk_srd(S_OUT, 18, 2048 * 1280)
    mk_srd(S_DBG, 20, 256)
    mk_srd(S_WS, 22, WS_BYTES)
    e(f's_cmp_ge_u32 s{sW}, 2')
    e(f's_cselect_b32 s{S_GU}, s14, s12'); e(f's_cselect_b32 s{S_GU + 1}, s15, s13')
    e(f's_and_b32 s{S_GU + 1}, s{S_GU + 1}, 0xffff')
    e(f's_mov_b32 s{S_GU + 2}, {640 * 3072}'); e(f's_mov_b32 s{S_GU + 3}, 0x20000')
    e(f's_mov_b32 s{sMask}, 0xffff0000')
    e(f's_mov_b32 s{sOnes}, 0x3f803f80')
    e(f's_mov_b32 s{sHi}, 0'); e(f's_mov_b32 s{sHi + 1}, -1')
    e(f's_cmp_lt_u32 s{sJ}, 5')
    e(f's_cselect_b32 s{sQS}, {hex(f2u(20 ** -0.5 * LOG2E))}, 1.0')

    vFl = 31
    e(f's_lshr_b32 s{sT0}, s{sJ}, 2')
    e(f's_lshl_b32 s{sT1}, s{sI}, 2')
    e(f's_add_u32 s{sT0}, s{sT0}, s{sT1}')
    e(f's_lshl_b32 s{sT0}, s{sT0}, 1')
    e(f's_lshr_b32 s{sT1}, s{sW}, 1')
    e(f's_add_u32 s{sT0}, s{sT0}, s{sT1}')
    e(f's_lshl_b32 s{sT0}, s{sT0}, 7')
    e(f's_and_b32 s{sT1}, s{sJ}, 3')
    e(f's_lshl_b32 s{sT1}, s{sT1}, 3')
    e(f's_add_u32 s{sT0}, s{sT0}, s{sT1}')
    e(f's_and_b32 s{sT1}, s{sW}, 1')
    e(f's_lshl_b32 s{sT1}, s{sT1}, 2')
    e(f's_add_u32 s3, s{sT0}, s{sT1}')
    e(f's_lshl_b32 s{sT2}, s{sCU}, 4')
    e(f's_lshl_b32 s{sT1}, s{sW}, 2')
    e(f's_add_u32 s2, s{sT2}, s{sT1}')
    e(f'v_lshlrev_b32 v{vT[0]}, 16, v{vL}')
    e(f'v_add_u32 v{vT[0]}, s3, v{vT[0]}')
    e(f'v_writelane_b32 v{vT[0]}, s2, 0')
    e(f'v_mov_b32 v{vT[3]}, 0')
    e('s_mov_b64 exec, 15')
    e(f'buffer_store_dword v{vT[3]}, v{vT[0]}, {srd(S_WS)}, 0 offen sc1', tag='reset')
    e('s_mov_b64 exec, -1')

    e(f's_mul_i32 s{sT0}, s{sW}, {16 * 3840}')
    e(f's_lshl_b32 s{sT1}, s{sJ}, 8')
    e(f's_add_u32 s{sT0}, s{sT0}, s{sT1}')
    e(f's_cmp_eq_u32 s{sJ}, 15')
    e(f's_cselect_b32 s{sT0}, {OOB}, s{sT0}')
    e(f'v_mul_u32_u24 v{vT[0]}, 3840, v{vT[1]}')
    e(f'v_add_u32 v{vT[0]}, s{sT0}, v{vT[0]}')
    e(f'v_lshlrev_b32 v{vT[2]}, 2, v{vT[1]}')
    e(f'v_and_b32 v{vT[4]}, 15, v{vL}')
    e(f'v_xor_b32 v{vT[2]}, v{vT[2]}, v{vT[4]}')
    e(f'v_lshl_add_u32 v{vQ[0]}, v{vT[2]}, 4, v{vT[0]}')
    for u in range(1, 4): e(f'v_add_u32 v{vQ[u]}, {u * (4 * 3840 - 1024)}, v{vQ[0]}')
    e(f's_lshl_b32 s{sT0}, s{sW}, 8')
    e(f's_add_u32 s{sT0}, s{sT0}, s{sCU}')
    e(f's_mul_i32 s{sT1}, s{sT0}, 6554')
    e(f's_lshr_b32 s{sT1}, s{sT1}, 16')
    e(f's_mul_i32 s{sT2}, s{sT1}, 10')
    e(f's_sub_u32 s{sT2}, s{sT0}, s{sT2}')
    e(f's_cmp_ge_u32 s{sT1}, 48')
    e(f's_cselect_b32 s{S_RT}, s8, s16'); e(f's_cselect_b32 s{S_RT + 1}, s9, s17')
    e(f's_cselect_b32 s{S_RT + 2}, {640 * 1280}, {1536 * 1280}') if False else None
    e(f's_mov_b32 s{S_RT + 2}, {1536 * 1280}')
    e(f's_cselect_b32 s{S_RT + 2}, {640 * 1280}, s{S_RT + 2}')
    e(f's_cselect_b32 s{sT3}, 48, 0')
    e(f's_and_b32 s{S_RT + 1}, s{S_RT + 1}, 0xffff')
    e(f's_mov_b32 s{S_RT + 3}, 0x20000')
    e(f's_sub_u32 s{sT3}, s{sT1}, s{sT3}')
    e(f's_mul_i32 s{sT3}, s{sT3}, {32 * 1280}')
    e(f's_lshl_b32 s{sT2}, s{sT2}, 7')
    e(f's_add_u32 s{sT3}, s{sT3}, s{sT2}')
    e(f'v_lshrrev_b32 v{vT[0]}, 3, v{vL}')
    e(f'v_mul_u32_u24 v{vT[0]}, 1280, v{vT[0]}')
    e(f'v_and_b32 v{vT[2]}, 7, v{vL}')
    e(f'v_lshl_add_u32 v{vT[0]}, v{vT[2]}, 4, v{vT[0]}')
    e(f'v_add_u32 v{vRT[0]}, s{sT3}, v{vT[0]}')
    for u in range(1, 4): e(f'v_add_u32 v{vRT[u]}, {u * (8 * 1280 - 1024)}, v{vRT[0]}')
    e(f's_lshl_b32 s{sT1}, s{sT0}, 12')
    e(f's_add_u32 s{sT1}, s{sT1}, {WS_WT}')
    e(f's_cmp_ge_u32 s{sT0}, 680')
    e(f's_cselect_b32 s{sT1}, {OOB}, s{sT1}')
    e(f'v_lshl_add_u32 v{vRTs}, v{vL}, 4, s{sT1}')
    vh, vgrp, vr_, vck = vT[5], vT[6], vT[7], vT[8]
    e(f'v_lshrrev_b32 v{vh}, 5, v{vL}')
    e(f'v_and_b32 v{vgrp}, 1, v{vT[1]}')
    e(f'v_bfe_u32 v{vr_}, v{vL}, 2, 2')
    e(f'v_and_b32 v{vT[0]}, 1, v{vL}')
    e(f'v_bfe_u32 v{vT[2]}, v{vL}, 1, 1')
    e(f'v_lshl_add_u32 v{vck}, v{vT[0]}, 1, v{vT[2]}')
    e(f'v_lshlrev_b32 v{vck}, 3, v{vck}')
    e(f'v_lshl_add_u32 v{vT[0]}, v{vT[1]}, 3, v{vr_}')
    e(f'v_and_b32 v{vT[2]}, 3, v{vL}')
    e(f'v_lshlrev_b32 v{vT[2]}, 3, v{vT[2]}')
    e(f'v_lshl_add_u32 v{vT[0]}, v{vT[0]}, 7, v{vT[2]}')
    e(f's_add_u32 s{sT0}, s{sLdsW}, {slot_of(("rt", 0))}')
    e(f'v_add_u32 v{vRTr}, s{sT0}, v{vT[0]}')
    vrow = vT[9]
    e(f'v_lshl_add_u32 v{vrow}, v{vh}, 3, v{vr_}')
    e(f'v_lshl_add_u32 v{vT[0]}, v{vgrp}, 5, v{vck}')
    e(f'v_lshl_add_u32 v{vT[0]}, v{vr_}, 6, v{vT[0]}')
    e(f'v_lshl_add_u32 v{vTq[0]}, v{vrow}, 8, v{vT[0]}')
    for T in range(1, 4): e(f'v_xor_b32 v{vTq[T]}, {T << 6}, v{vTq[0]}')
    e(f'v_and_b32 v{vT[0]}, 2, v{vr_}')
    e(f'v_or_b32 v{vT[0]}, v{vT[0]}, v{vgrp}')
    e(f'v_lshl_add_u32 v{vT[0]}, v{vT[0]}, 5, v{vck}')
    e(f'v_lshl_add_u32 v{vT[0]}, v{vrow}, 7, v{vT[0]}')
    e(f'v_lshl_add_u32 v{vTa[0]}, v{vgrp}, 13, v{vT[0]}')
    for T in range(1, 4): e(f'v_xor_b32 v{vTa[T]}, {T << 5}, v{vTa[0]}')
    vTb0 = 30
    e(f'v_lshl_add_u32 v{vT[0]}, v{vgrp}, 5, v{vck}')
    e(f'v_lshl_add_u32 v{vT[0]}, v{vrow}, 6, v{vT[0]}')
    e(f'v_lshl_add_u32 v{vTb0}, v{vgrp}, 13, v{vT[0]}')
    e(f's_and_b32 s{sT0}, s{sW}, 1')
    e(f's_lshr_b32 s{sT1}, s{sW}, 1')
    e(f's_and_b32 s{sT2}, s{sJ}, 1')
    e(f's_mul_i32 s{sT3}, s{sJ}, 192')
    e(f's_lshl_b32 s{sSt}, s{sT2}, 6')
    e(f's_add_u32 s{sSt}, s{sSt}, s{sT3}')
    e(f's_mul_i32 s{sPf}, s{sT0}, {32 * 3072}')
    e(f's_add_u32 s{sPf}, s{sPf}, s{sSt}')
    e(f'v_lshl_add_u32 v{vT[0]}, v{vgrp}, 1, s{sT1}')
    e(f'v_lshlrev_b32 v{vT[0]}, 1, v{vT[0]}')
    e(f'v_and_b32 v{vT[2]}, 7, v{vL}')
    e(f'v_xor_b32 v{vT[0]}, v{vT[0]}, v{vT[2]}')
    e(f'v_lshrrev_b32 v{vT[2]}, 3, v{vL}')
    e(f'v_mul_u32_u24 v{vT[2]}, 3072, v{vT[2]}')
    e(f'v_lshl_add_u32 v{vT[0]}, v{vT[0]}, 4, v{vT[2]}')
    e(f'v_add_u32 v{vGA[0]}, s{sPf}, v{vT[0]}')
    for u in range(1, 4): e(f'v_add_u32 v{vGA[u]}, {u * (8 * 3072 - 1024)}, v{vGA[0]}')
    e(f's_xor_b32 s{sT2}, s{sT2}, 1')
    e(f's_lshl_b32 s{sT2}, s{sT2}, 7')
    e(f's_add_u32 s{sT3}, s{sT3}, s{sT2}')
    e(f's_mul_i32 s{sPf}, s{sT0}, {64 * 3072}')
    e(f's_add_u32 s{sPf}, s{sPf}, s{sT3}')
    e(f's_lshl_b32 s{sT2}, s{sT1}, 1')
    e(f'v_and_b32 v{vT[0]}, 3, v{vL}')
    e(f'v_xor_b32 v{vT[0]}, s{sT2}, v{vT[0]}')
    e(f'v_lshrrev_b32 v{vT[2]}, 2, v{vL}')
    e(f'v_mul_u32_u24 v{vT[2]}, 3072, v{vT[2]}')
    e(f'v_lshl_add_u32 v{vT[0]}, v{vT[0]}, 4, v{vT[2]}')
    e(f'v_add_u32 v{vGB[0]}, s{sPf}, v{vT[0]}')
    for u in range(1, 4): e(f'v_add_u32 v{vGB[u]}, {u * (16 * 3072 - 1024)}, v{vGB[0]}')
    e(f's_lshl_b32 s{sT2}, s{sI}, 1')
    e(f's_add_u32 s{sT2}, s{sT2}, s{sT1}')
    e(f's_mul_i32 s6, s{sT2}, {O_BLK}')
    e(f's_mul_i32 s{sT2}, s{sT2}, {H_BLK}')
    e(f's_add_u32 s{sT2}, s{sT2}, {WS_H}')
    e(f's_lshl_b32 s4, s{sSt}, 6')
    e(f's_add_u32 s4, s4, s{sT2}')
    e(f's_lshl_b32 s5, s{sT3}, 6')
    e(f's_add_u32 s5, s5, s{sT2}')
    e(f's_mul_i32 s{sT2}, s{sJ}, {5 * 1024}')
    e(f's_add_u32 s6, s6, s{sT2}')
    e(f's_add_u32 s6, s6, {WS_O}')
    e(f'v_and_b32 v{vT[0]}, 31, v{vL}')
    e(f'v_bfe_u32 v{vT[2]}, v{vL}, 1, 3')
    e(f'v_xor_b32 v{vT[2]}, v{vT[2]}, v{vh}')
    e(f'v_lshlrev_b32 v{vT[2]}, 4, v{vT[2]}')
    e(f'v_lshl_add_u32 v{vT[0]}, v{vT[0]}, 7, v{vT[2]}')
    e(f'v_add_u32 v{vXR[0]}, s{sLdsW}, v{vT[0]}')
    for s in range(1, 4): e(f'v_xor_b32 v{vXR[s]}, {s << 5}, v{vXR[0]}')
    for k in range(4): e(f'v_mov_b32 v{vS[k]}, 0')

    class Win:
        def __init__(self, regs): self.regs = regs; self.cur = {r: 0 for r in regs}
        def off(self, reg, byte):
            w = (byte // 65536) * 65536
            fix = []
            if w != self.cur[reg]:
                d = w - self.cur[reg]
                fix = [Ins(f'v_add_u32 v{reg}, {d}, v{reg}') if d > 0 else Ins(f'v_subrev_u32 v{reg}, {-d}, v{reg}')]
                self.cur[reg] = w
            return fix, byte - w

    wx = Win(vXR)
    nxt = NI
    for s in range(10):
        g.add(WaitTag(f'e{s}'))
        for ks in range(4):
            fix, im = wx.off(vXR[ks], s * SLOT)
            g.add(fix)
            e(f'ds_read_b128 {vr("v", XN + 16 * s + 4 * ks, 4)}, v{vXR[ks]} offset:{im}')
        if s > 0:
            for d in range(16):
                r = XN + 16 * (s - 1) + d
                e(f'v_dot2c_f32_bf16 v{vS[d & 1]}, s{sOnes}, v{r}')
                e(f'v_dot2c_f32_bf16 v{vS[2 + (d & 1)]}, v{r}, v{r}')
        g.add(WaitRegs(rlist('v', XN + 16 * s, 16)))
        while nxt <= s + 10:
            pre, d = dma_entry(nxt); g.add(pre); g.add(d); nxt += 1
    for d in range(16):
        r = XN + 16 * 9 + d
        e(f'v_dot2c_f32_bf16 v{vS[d & 1]}, s{sOnes}, v{r}')
        e(f'v_dot2c_f32_bf16 v{vS[2 + (d & 1)]}, v{r}, v{r}')
    g.add(g.stamp('x_in'))
    steps = [('q', s) for s in range(10)] + [('ga', s) for s in range(10)] + [('gb', s) for s in range(5)]
    groups = []
    for si, (kind, s) in enumerate(steps):
        nks, nT = (8, 2) if kind == 'gb' else (4, 4)
        for ks in range(nks):
            for T in range(nT):
                groups.append((si, kind, s, ks, T))
    wins = {'q': Win(vTq), 'ga': Win(vTa), 'gb': Win(vTb)}
    def frag_reads(gi):
        si, kind, s, ks, T = groups[gi]
        w = wins[kind]; reg = w.regs[T]
        kst, rho = {'q': (4096, 1024), 'ga': (2048, 512), 'gb': (1024, 256)}[kind]
        fix, im = w.off(reg, slot_of((kind, s)))
        a = RING + 4 * (gi % NF)
        return fix, [Ins(f'ds_read_b64_tr_b16 a[{a + 2 * p}:{a + 2 * p + 1}], v{reg} offset:{im + ks * kst + p * rho}') for p in range(2)]
    def mfma_of(gi):
        si, kind, s, ks, T = groups[gi]
        kk = (8 * s + ks) if kind == 'gb' else (4 * s + ks)
        acc = vr('a', A1 + 16 * T, 16) if kind == 'q' else vr('v', ACC2 + 16 * T, 16) if kind == 'ga' else vr('a', A3 + 16 * T, 16)
        a = RING + 4 * (gi % NF)
        return Ins(f'v_mfma_f32_32x32x16_bf16 {acc}, a[{a}:{a + 3}], {vr("v", XN + 4 * kk, 4)}, {acc if kk else 0}')

    g.add(WaitTag([f'e{eidx[steps[0]]}', 'reset']))
    e('s_barrier')
    for gi in range(D):
        fix, rd = frag_reads(gi); g.add(fix); g.add(rd)
    a, b, c, d_ = vN
    e(f'v_add_f32 v{vS[0]}, v{vS[0]}, v{vS[1]}')
    e(f'v_add_f32 v{vS[2]}, v{vS[2]}, v{vS[3]}')
    e(f'v_mov_b32 v{vS[1]}, v{vS[0]}')
    e(f'v_mov_b32 v{vS[3]}, v{vS[2]}')
    e(f'v_permlane32_swap_b32 v{vS[0]}, v{vS[1]}')
    e(f'v_permlane32_swap_b32 v{vS[2]}, v{vS[3]}')
    e(f'v_add_f32 v{vS[0]}, v{vS[0]}, v{vS[1]}')
    e(f'v_add_f32 v{vS[2]}, v{vS[2]}, v{vS[3]}')
    e(f'v_mul_f32 v{a}, {hex(f2u(1 / 640))}, v{vS[0]}')
    e(f'v_mul_f32 v{b}, {hex(f2u(1 / 640))}, v{vS[2]}')
    e(f'v_fma_f32 v{b}, -v{a}, v{a}, v{b}')
    e(f'v_max_f32 v{b}, 0, v{b}')
    e(f'v_cvt_pk_bf16_f32 v{c}, v{a}, v{b}')
    e(f'v_lshlrev_b32 v{a}, 16, v{c}')
    e(f'v_and_b32 v{b}, s{sMask}, v{c}')
    e(f'v_add_f32 v{b}, {hex(f2u(1e-5))}, v{b}')
    e(f'v_cvt_pk_bf16_f32 v{b}, v{b}, v{b}')
    e(f'v_and_b32 v{b}, s{sMask}, v{b}')
    e(f'v_sqrt_f32 v{b}, v{b}')
    e(f'v_cvt_pk_bf16_f32 v{b}, v{b}, v{b}')
    e(f'v_and_b32 v{b}, s{sMask}, v{b}')
    e(f'v_rcp_f32 v{vR}, v{b}')
    e(f'v_mul_f32 v{vNB}, -v{a}, v{vR}') if False else e(f'v_mul_f32_e64 v{vNB}, -v{a}, v{vR}')
    def norm_ops(dw):
        r = XN + dw; t0, t1 = vN[2 * (dw & 1)], vN[2 * (dw & 1) + 1]
        return [Ins(f'v_lshlrev_b32 v{t0}, 16, v{r}'), Ins(f'v_and_b32 v{t1}, s{sMask}, v{r}'),
                Ins(f'v_fma_f32 v{t0}, v{t0}, v{vR}, v{vNB}'), Ins(f'v_fma_f32 v{t1}, v{t1}, v{vR}, v{vNB}'),
                Ins(f'v_cvt_pk_bf16_f32 v{r}, v{t0}, v{t1}')]
    for dw in range(5): g.add(norm_ops(dw))
    g.add(g.stamp('p1_start'))

    NG = len(groups)
    G2, G3 = 160, 320
    mem = [[] for _ in range(NG + 1)]
    fil = [[] for _ in range(NG + 1)]
    pre = [[] for _ in range(NG + 1)]
    first_g = {}
    for gi, x in enumerate(groups): first_g.setdefault(x[0], gi)
    for gi in range(G2):
        if gi + 5 < 160: fil[gi] += norm_ops(gi + 5)
    for si in range(len(steps) - 1):
        gb = first_g[si + 1] - D
        pre[gb] += [WaitTag(f'e{eidx[steps[si + 1]]}'), Ins('s_barrier')]
        if si >= 1:
            free_upto = eidx[steps[si]] - 1
            pos = gb
            while nxt < len(ent) and nxt - 10 <= free_upto:
                p_, d = dma_entry(nxt); nxt += 1
                mem[pos] += p_
                for u in range(4): mem[pos + 1 + u].append(d[u])
                pos += 5
    assert nxt == len(ent)
    g0 = first_g[2] + 1
    mem[g0].append(WaitTag(f'e{eidx[("rt", 0)]}'))
    for y in range(4):
        mem[g0 + y] += [Ins(f'ds_read_b64_tr_b16 a[{RTA + 4 * y + 2 * p}:{RTA + 4 * y + 2 * p + 1}], v{vRTr} offset:{32 * y + 512 * p}') for p in range(2)]
    for y in range(4):
        mem[first_g[3] + 1 + 2 * y].append(Ins(f'buffer_store_dwordx4 a[{RTA + 4 * y}:{RTA + 4 * y + 3}], v{vRTs}, {srd(S_WS)}, 0 offen offset:{1024 * y} sc1', tag='rts'))
    gb = first_g[8] - D
    pre[gb].insert(0, WaitTag('rts'))
    fil[gb - 1] += [Ins(f'v_mov_b32 v{vT[0]}, s{sCU}'), Ins(f'v_mov_b32 v{vT[1]}, 1')]
    mem[gb + 6] += [Ins(f's_cmp_eq_u32 s{sW}, 0'), Ins('s_cselect_b64 exec, 1, 0') if False else Ins(f's_cselect_b32 s{sT0}, 0, {OOB}'),
                    Ins('s_mov_b64 exec, 1'),
                    Ins(f'buffer_store_byte v{vT[1]}, v{vT[0]}, {srd(S_DBG)}, s{sT0} offen sc1'), Ins('s_mov_b64 exec, -1')]

    def spread(ops, start, per, total=None):
        gi = start; n = 0
        for o in ops:
            if isinstance(o, Ins) and o.is_valu():
                cost = 2 if o.kind == 'trans' else 1
                if n + cost > per and n > 0:
                    gi += 1; n = 0
                fil[min(gi, NG)].append(o); n += cost
            else:
                if n > 0:
                    gi += 1; n = 0
                mem[min(gi, NG)].append(o)
        return gi

    vSt = 12
    vFa = 13
    ops = [Ins(f'v_mov_b32 v{vTb[0]}, v{vTb0}'), Ins(f'v_xor_b32 v{vTb[1]}, 32, v{vTb0}'),
           Ins(f'v_and_b32 v{vT[0]}, 31, v{vL}'), Ins(f'v_lshrrev_b32 v{vT[1]}, 5, v{vL}'),
           Ins(f'v_lshlrev_b32 v{vT[0]}, 4, v{vT[0]}'), Ins(f'v_lshl_add_u32 v{vSt}, v{vT[1]}, 11, v{vT[0]}'),
           Ins(f's_mul_i32 s{sSt}, s{sI}, {QKV_BLK}'), Ins(f's_lshl_b32 s{sT0}, s{sJ}, 15'), Ins(f's_add_u32 s{sSt}, s{sSt}, s{sT0}'),
           Ins(f's_lshl_b32 s{sT0}, s{sW}, 9'), Ins(f's_add_u32 s{sSt}, s{sSt}, s{sT0}'), Ins(f's_add_u32 s{sSt}, s{sSt}, {WS_QKV}'),
           Ins(f's_cmp_eq_u32 s{sJ}, 15'), Ins(f's_cselect_b32 s{sSt}, {OOB}, s{sSt}')]
    PK = [[20, 21, 22, 23], [24, 25, 26, 27]]; tq = [28, 29]
    for T in range(4):
        for q2 in range(2):
            pk = PK[q2]
            for p in range(4):
                ar = A1 + 16 * T + 8 * q2 + 2 * p
                ops += [Ins(f'v_accvgpr_read_b32 v{tq[0]}, a{ar}'), Ins(f'v_accvgpr_read_b32 v{tq[1]}, a{ar + 1}'),
                        Ins(f'v_mul_f32 v{tq[0]}, s{sQS}, v{tq[0]}'), Ins(f'v_mul_f32 v{tq[1]}, s{sQS}, v{tq[1]}'),
                        Ins(f'v_cvt_pk_bf16_f32 v{pk[p]}, v{tq[0]}, v{tq[1]}')]
            ops += [Ins(f'buffer_store_dwordx4 v[{pk[0]}:{pk[3]}], v{vSt}, {srd(S_WS)}, s{sSt} offen sc1', tag='qst'), Ins(f's_add_u32 s{sSt}, s{sSt}, 4096')]
    gq_end = spread(ops, G2 + 1, 4)

    def flag_store(base, soff, tagwait):
        return [WaitTag(tagwait), Ins(f's_add_u32 s{sT0}, {soff}, {base}'), Ins('s_mov_b64 exec, 1'),
                Ins(f'buffer_store_dword v{vOne}, v{vZero}, {srd(S_WS)}, s{sT0} offen sc1'), Ins('s_mov_b64 exec, -1')]
    vOne, vZero = 18, 19
    fil[G2] += [Ins(f'v_mov_b32 v{vOne}, 1'), Ins(f'v_mov_b32 v{vZero}, 0')]
    gf1 = first_g[opt.get('f1_step', 16)] + 2
    assert gf1 > gq_end
    mem[gf1] += flag_store(WS_F1, 's2', 'qst')

    vPl = [28, 29, 30]
    gd = max(first_g[14], gq_end + 2)
    ld_dbg = f'buffer_load_dword v{vPl[0]}, v{vFa}, {srd(S_DBG)}, 0 offen sc1'
    fil[gd - 1].append(Ins(f'v_lshlrev_b32 v{vFa}, 2, v{vL}'))
    mem[gd].append(Ins(ld_dbg))
    gd2 = gd + 12
    fil[gd2] += g.poll_check([ld_dbg], [f'v_cmp_ne_u32 vcc, 0x01010101, v{vPl[0]}'])
    vW0, vW1 = 2, 3
    vH = [4, 5, 20, 21]
    ops = [Ins(f's_lshr_b32 s{sT0}, s{sJ}, 3'), Ins(f's_lshl_b32 s{sT0}, s{sT0}, 2'), Ins(f's_and_b32 s{sT1}, s{sJ}, 3'),
           Ins(f's_add_u32 s7, s{sT0}, s{sT1}'),
           Ins(f's_bfe_u32 s8, s{sJ}, 0x10002'),
           Ins(f's_mul_i32 s{sWb}, s7, 5120'), Ins(f's_add_u32 s{sWb}, s{sWb}, {WS_WT}'),
           Ins(f's_mul_i32 s{sT0}, s{sW}, {12 * 40960}'), Ins(f's_add_u32 s9, s{sWb}, s{sT0}'),
           Ins(f's_mul_i32 s{sT0}, s{sW}, {5 * 40960}'), Ins(f's_add_u32 s10, s{sWb}, s{sT0}'), Ins(f's_add_u32 s10, s10, {48 * 40960}'),
           Ins(f's_lshl_b32 s{sT0}, s{sI}, 1'), Ins(f's_add_u32 s11, s{sT0}, s8'),
           Ins(f's_mul_i32 s{sHb}, s11, {H_BLK}'), Ins(f's_mul_i32 s{sT0}, s{sW}, {48 * 1024}'), Ins(f's_add_u32 s{sHb}, s{sHb}, s{sT0}'), Ins(f's_add_u32 s{sHb}, s{sHb}, {WS_H}'),
           Ins(f's_mul_i32 s{sOb}, s11, {O_BLK}'), Ins(f's_mul_i32 s{sT0}, s{sW}, {20 * 1024}'), Ins(f's_add_u32 s{sOb}, s{sOb}, s{sT0}'), Ins(f's_add_u32 s{sOb}, s{sOb}, {WS_O}')]
    for k, o in enumerate(ops): mem[gd + 1 + k // 2].append(o)
    fil[gd + 1] += [Ins(f'v_lshlrev_b32 v{vW0}, 4, v{vL}'), Ins(f'v_add_u32 v{vW1}, 4096, v{vW0}')]
    KS_ORDER = [0, 1, 4, 5, 6, 7, 10, 11, 2, 3, 8, 9]
    WD_A = [0, 20, 40] + [124 + 20 * k for k in range(6)] + [64, 84, 104]
    def w_loads(sbase, ks, abase, c='a'):
        r = [Ins(f's_add_u32 s{sPf}, {sbase}, {ks * 40960}')]
        for nt in range(5):
            r.append(Ins(f'buffer_load_dwordx4 {vr(c, abase + 4 * nt, 4)}, v{vW1 if nt == 4 else vW0}, {srd(S_WS)}, s{sPf} offen offset:{(nt & 3) * 1024} sc1'))
        return r
    pos = max(gd2 + 1, first_g[16] + 4)
    pf_gap = opt.get('pf_gap', 1)
    NPF1 = opt.get('npf1', 9)
    gk = first_g[opt.get('kv_step', 20)]
    wd_done = 0
    for p in range(NPF1):
        l = w_loads('s9', KS_ORDER[p], WD_A[p])
        if pos + 5 * pf_gap >= gk - 14: break
        mem[pos].append(l[0])
        for x in l[1:]:
            mem[pos].append(x); pos += pf_gap
        wd_done += 1

    ops = []
    for b in range(3):
        ops += [Ins(f's_sub_u32 s{sT0}, s{sI}, {2 - b}'), Ins(f's_max_i32 s{sT0}, s{sT0}, 0'), Ins(f's_lshl_b32 s{12 + b}, s{sT0}, 8'),
                Ins(f's_mul_i32 s{sBlk + b}, s{sT0}, {QKV_BLK}')]
    for k, o in enumerate(ops): mem[gk - 20 + k // 2].append(o)
    ld_f1 = [f'buffer_load_dword v{vPl[b]}, v{vFa}, {srd(S_WS)}, s{12 + b} offen sc1' for b in range(3)]
    for b in range(3): mem[gk - 13 + b].append(Ins(ld_f1[b]))
    vKV = 6
    ops = [Ins(f's_lshr_b32 s{sT0}, s{sW}, 1'), Ins(f's_and_b32 s{sT1}, s{sW}, 1'),
           Ins(f's_mul_i32 s{sT2}, s{sT0}, {80 * 2048}'), Ins(f's_mul_i32 s{sT3}, s{sJ}, {5 * 2048}'),
           Ins(f's_add_u32 s15, s{sT3}, {WS_QKV}'),
           Ins(f's_add_u32 s{sT2}, s{sT2}, s15'), Ins(f's_lshl_b32 s{sT1}, s{sT1}, 10'), Ins(f's_add_u32 s{sT2}, s{sT2}, s{sT1}'),
           Ins(f's_add_u32 s{sT2}, s{sT2}, {80 * 2048}'),
           Ins(f's_mul_i32 s16, s{sT0}, {6400 - 6144}'), Ins(f's_add_u32 s16, s16, 6144'),
           Ins(f's_lshl_b32 s17, s{sT0}, 6'),
           Ins(f's_mul_i32 s{sKV}, s{sT0}, {V_BASE - K_BASE}'), Ins(f's_add_u32 s{sKV}, s{sKV}, s{sT1}'), Ins(f's_add_u32 s{sKV}, s{sKV}, {K_BASE}')]
    for k, o in enumerate(ops): mem[gk - 10 + k // 2].append(o)
    fil[gk - 1].append(Ins(f'v_add_u32 v{vKV}, s{sT2}, v{vW0}'))
    fil[gk] += g.poll_check(ld_f1, [f'v_and_b32 v{vPl[0]}, v{vPl[0]}, v{vPl[1]}', f'v_and_b32 v{vPl[0]}, v{vPl[0]}, v{vPl[2]}', f'v_cmp_ne_u32 vcc, 1, v{vPl[0]}'])
    pos = gk + 1
    for o in range(5):
        mem[pos] += [Ins(f's_mul_i32 s18, s16, {o}'), Ins(f's_mul_i32 s{sT0}, s17, {V_CLASS[o]}'), Ins(f's_add_u32 s18, s18, s{sT0}'), Ins(f's_add_u32 s18, s18, s{sKV}')]
        for b in (2, 1, 0):
            mem[pos] += [Ins(f's_add_u32 m0, s18, {b * 2048}'), Ins(f's_add_u32 s{sT0}, s{sBlk + b}, {o * 2048}'),
                         Ins(f'buffer_load_dwordx4 v{vKV}, {srd(S_WS)}, s{sT0} offen sc1 lds', tag='kv')]
            pos += 1
    QF1 = [96, 100]; QRAW = 104; QF2 = [108, 112]
    assert pos >= G3 + 10
    mem[pos] += [Ins(f's_lshl_b32 s{sT0}, s{sW}, 9'), Ins(f's_add_u32 s{sT0}, s{sT0}, s15'), Ins(f's_add_u32 s{sT0}, s{sT0}, s{sBlk + 2}'),
                 Ins(f'buffer_load_dwordx4 {vr("v", QF1[0], 4)}, v{vSt}, {srd(S_WS)}, s{sT0} offen sc1'),
                 Ins(f's_add_u32 s{sT0}, s{sT0}, 4096')]
    mem[pos + 1] += [Ins(f'buffer_load_dwordx4 {vr("v", QRAW, 4)}, v{vSt}, {srd(S_WS)}, s{sT0} offen sc1')]
    mem[pos + 2] += [Ins(f'buffer_load_dwordx4 {vr("v", QF1[1], 4)}, v{vSt}, {srd(S_WS)}, s{sT0} offen offset:2048 sc1')]
    pos += 3
    for p in range(wd_done, NPF1):
        l = w_loads('s9', KS_ORDER[p], WD_A[p])
        mem[pos].append(l[0])
        for x in l[1:]:
            mem[min(pos, NG)].append(x); pos += pf_gap
        wd_done += 1

    vHs = 7
    def silu_ops(gr, ur, pk, tmp, from_agpr):
        r = []
        for p in range(4):
            gs, us, ts = [], [], []
            for k in range(2):
                if from_agpr:
                    gv, uv = tmp[2 + 2 * k], tmp[3 + 2 * k]
                    r += [Ins(f'v_accvgpr_read_b32 v{gv}, a{gr + 2 * p + k}'), Ins(f'v_accvgpr_read_b32 v{uv}, a{ur + 2 * p + k}')]
                else:
                    gv, uv = gr + 2 * p + k, ur + 2 * p + k
                gs.append(gv); us.append(uv); ts.append(tmp[k])
            for k in range(2): r.append(Ins(f'v_mul_f32 v{ts[k]}, {hex(f2u(-LOG2E))}, v{gs[k]}'))
            for k in range(2): r.append(Ins(f'v_exp_f32 v{ts[k]}, v{ts[k]}'))
            for k in range(2): r.append(Ins(f'v_mul_f32 v{us[k]}, v{gs[k]}, v{us[k]}'))
            for k in range(2): r.append(Ins(f'v_add_f32 v{ts[k]}, 1.0, v{ts[k]}'))
            for k in range(2): r.append(Ins(f'v_rcp_f32 v{ts[k]}, v{ts[k]}'))
            for k in range(2): r.append(Ins(f'v_mul_f32 v{us[k]}, v{us[k]}, v{ts[k]}'))
            r.append(Ins(f'v_cvt_pk_bf16_f32 v{pk + p}, v{us[0]}, v{us[1]}'))
        return r
    ops = [Ins(f'v_and_b32 v{vT[0]}, 31, v{vL}'), Ins(f'v_lshrrev_b32 v{vT[1]}, 5, v{vL}'), Ins(f'v_lshlrev_b32 v{vT[0]}, 4, v{vT[0]}'),
           Ins(f'v_lshl_add_u32 v{vHs}, v{vT[1]}, 10, v{vT[0]}'), Ins(f's_and_b32 s19, s{sW}, 1'), Ins(f's_lshl_b32 s19, s19, 9'), Ins(f'v_add_u32 v{vHs}, s19, v{vHs}')]
    spread(ops, G3 - 12, 2)
    ops = []
    for T in range(4):
        pk = ACC2 + 16 * T
        ops += silu_ops(ACC2 + 16 * T, ACC2 + 16 * T + 8, pk, [vT[0], vT[1]], False)
        if T == 2: ops.append(Ins('s_add_u32 s4, s4, 4096'))
        ops.append(Ins(f'buffer_store_dwordx4 {vr("v", pk, 4)}, v{vHs}, {srd(S_WS)}, s4 offen offset:{(T & 1) * 2048} sc1', tag='ha'))
    ge = spread(ops, G3 + 2, opt.get('silu_per', 4))
    print('QKV epilogue ends at group', gq_end, ' GU-A epilogue ends at group', ge, 'of', NG, ' Wd prefetched', wd_done, file=sys.stderr)

    for gi in range(NG):
        if gi in (G2, G3): g.add(g.stamp('pass'))
        g.add(mfma_of(gi))
        if gi + 1 < NG:
            a = RING + 4 * ((gi + 1) % NF)
            g.add(WaitRegs(rlist('a', a, 4)))
        g.add(pre[gi])
        fix = []
        if gi + D < NG:
            f0, rd = frag_reads(gi + D)
            g.add(f0); g.add(rd)
        g.add(mem[gi]); g.add(fil[gi])
    g.add(mem[NG]); g.add(fil[NG])
    g.add(g.stamp('p1_end'))

    CT = 116
    e(f's_lshl_b32 s{sT0}, s{sI}, 7')
    e(f's_sub_u32 s{sT0}, 256, s{sT0}')
    e(f'v_cmp_gt_i32 vcc, s{sT0}, v0')
    e(f'v_mov_b32 v{CT + 4}, 0x3f800000')
    e(f'v_mov_b32 v{CT + 1}, 0x3f80')
    e(f'v_mov_b32 v{CT + 2}, {hex(0x3f800000 | BIG)}')
    e(f'v_cndmask_b32 v{CT}, v{CT + 4}, v{CT + 2}, vcc')
    e(f'v_mov_b32 v{CT + 3}, v{CT + 1}')
    e(f'v_mov_b32 v{CT + 2}, v{CT}')
    e(f'v_mov_b32 v{CT + 5}, v{CT + 1}')
    e(f'v_mov_b32 v{CT + 6}, v{CT + 4}')
    e(f'v_mov_b32 v{CT + 7}, v{CT + 1}')
    e(f'v_lshlrev_b32 v{vT[2]}, 4, v0')
    e(f'v_and_b32 v{vT[3]}, 2047, v{vT[2]}')
    e(f'ds_write_b128 v{vT[2]}, {vr("v", CT, 4)} offset:{C_BASE}', tag='cst')
    e(f'ds_write_b128 v{vT[3]}, {vr("v", CT + 4, 4)} offset:{C_BASE + 4096}', tag='cst')
    for T in range(2):
        pk = 124 + 4 * T
        g.add(silu_ops(A3 + 16 * T, A3 + 16 * T + 8, pk, vT[0:2] + vT[4:8], True))
        e(f'buffer_store_dwordx4 {vr("v", pk, 4)}, v{vHs}, {srd(S_WS)}, s5 offen offset:{T * 2048} sc1', tag='hb')
        if T == 0:
            g.add(flag_store(WS_F2, 's3', 'ha'))
    for p in range(wd_done, 12):
        g.add(w_loads('s9', KS_ORDER[p], WD_A[p]))
    if opt.get('stop') == 'p1':
        g.add(WaitAll())
        return finish(g, opt)

    SB = [32, 48, 64]; PB = [80, 88]; OA = [132, 148]; MK = [164, 180]
    KF = [[196, 200, 204], [208, 212, 216]]
    VF = [220, 228]
    vK1, vK2, vV = 8, 9, [10, 11]
    vM = [14, 15]
    e(f'v_and_b32 v{vT[0]}, 31, v{vL}')
    e(f'v_lshrrev_b32 v{vT[1]}, 5, v{vL}')
    e(f's_lshl_b32 s{sT0}, s{sW}, 9')
    e(f'v_lshl_add_u32 v{vT[2]}, v{vT[0]}, 4, s{sT0}')
    e(f'v_mul_u32_u24 v{vT[3]}, 6144, v{vT[1]}')
    e(f'v_add3_u32 v{vK1}, v{vT[2]}, v{vT[3]}, s{sT0}') if False else None
    e(f'v_add_u32 v{vK1}, v{vT[2]}, v{vT[3]}')
    e(f'v_add_u32 v{vK1}, {K_BASE}, v{vK1}')
    e(f'v_mov_b32 v{vT[3]}, {K_BASE + 2 * 6144}')
    e(f'v_mov_b32 v{vT[4]}, {C_BASE}')
    e(f'v_cndmask_b32 v{vT[3]}, v{vT[3]}, v{vT[4]}, s[{sHi}:{sHi + 1}]')
    e(f'v_add_u32 v{vK2}, v{vT[2]}, v{vT[3]}')
    e(f'v_bfe_u32 v{vT[2]}, v{vL}, 2, 2')
    e(f'v_lshl_add_u32 v{vT[2]}, v{vT[1]}, 2, v{vT[2]}')
    e(f'v_lshl_add_u32 v{vT[2]}, v{vT[2]}, 4, s{sT0}')
    def slotmask(slots):
        m = 0
        for l in range(64):
            if 4 * ((l >> 4) & 1) + (l & 3) in slots: m |= 1 << l
        return m
    for hd in range(2):
        oa, ob = (0, 1) if hd == 0 else (3, 4)
        table = [v_oct(oa), v_oct(ob), v_oct(oa) + 8, v_oct(ob) + 8, v_oct(2) + 8 * hd]
        e(f'v_mov_b32 v{vV[hd]}, {C_BASE}')
        for s_, val in enumerate(table):
            m = slotmask([s_]); assert m >> 32 == m & 0xffffffff
            e(f's_mov_b32 exec_lo, {hex(m >> 32)}'); e(f's_mov_b32 exec_hi, {hex(m >> 32)}')
            e(f'v_mov_b32 v{vV[hd]}, {val}')
        e('s_mov_b64 exec, -1')
        e(f'v_add_u32 v{vV[hd]}, v{vV[hd]}, v{vT[2]}')
    e(f'v_mov_b32 v{vT[3]}, {hex(BIG << 16)}')
    for r in range(16):
        c = (r & 3) + 8 * (r >> 2)
        lo = (0xffffffff << c) & 0xffffffff; hi = (0xffffffff << (c + 4)) & 0xffffffff
        sm = sMk + 2 * (r & 1)
        e(f's_mov_b32 s{sm}, {hex(lo)}'); e(f's_mov_b32 s{sm + 1}, {hex(hi)}')
        e(f'v_cndmask_b32 v{MK[0] + r}, 0, v{vT[3]}, s[{sm}:{sm + 1}]')
        e(f'v_cndmask_b32 v{MK[1] + r}, v{vT[3]}, 0, s[{sm}:{sm + 1}]')
    hi = f's[{sHi}:{sHi + 1}]'
    e(f'v_mov_b32 v{vT[4]}, 0x3f80')
    e(f'v_cndmask_b32 v{QF2[0]}, v{QRAW}, v{vT[4]}, {hi}')
    e(f'v_cndmask_b32 v{QF2[0] + 1}, v{QRAW + 1}, 0, {hi}')
    e(f'v_mov_b32 v{QF2[0] + 2}, 0'); e(f'v_mov_b32 v{QF2[0] + 3}, 0')
    e(f'v_cndmask_b32 v{QF2[1]}, 0, v{vT[4]}, {hi}')
    e(f'v_mov_b32 v{QF2[1] + 1}, 0')
    e(f'v_cndmask_b32 v{QF2[1] + 2}, v{QRAW + 2}, 0, {hi}')
    e(f'v_cndmask_b32 v{QF2[1] + 3}, v{QRAW + 3}, 0, {hi}')
    g.add(WaitTag(['kv', 'cst']))
    e('s_barrier')
    g.add(g.stamp('att_start'))

    def k_reads(t):
        k = KF[t & 1]
        return [Ins(f'ds_read_b128 {vr("v", k[0], 4)}, v{vK1} offset:{512 * t}'), Ins(f'ds_read_b128 {vr("v", k[2], 4)}, v{vK2} offset:{512 * t}'),
                Ins(f'ds_read_b128 {vr("v", k[1], 4)}, v{vK1} offset:{512 * t + 3 * 6144}')]
    def qk(u):
        t, hd = u >> 1, u & 1
        s = vr('v', SB[u % 3], 16); k = KF[t & 1]
        c = vr('v', MK[0], 16) if t == 0 else vr('v', MK[1], 16) if t == 8 else '0'
        return [Ins(f'v_mfma_f32_32x32x16_bf16 {s}, {vr("v", k[hd], 4)}, {vr("v", QF1[hd], 4)}, {c}'),
                Ins(f'v_mfma_f32_32x32x16_bf16 {s}, {vr("v", k[2], 4)}, {vr("v", QF2[hd], 4)}, {s}')]
    def v_reads(u):
        t, hd = u >> 1, u & 1
        return [Ins(f'ds_read_b64_tr_b16 {vr("v", VF[u & 1] + 2 * x, 2)}, v{vV[hd]} offset:{512 * t + 128 * x}') for x in range(4)]
    def pv(u):
        t, hd = u >> 1, u & 1
        o = vr('v', OA[hd], 16)
        return [Ins(f'v_mfma_f32_32x32x16_bf16 {o}, {vr("v", VF[u & 1] + 4 * m, 4)}, {vr("v", PB[u & 1] + 4 * m, 4)}, {o if (t or m) else 0}') for m in range(2)]

    g.add(k_reads(0))
    for u in range(18 + 2):
        t = u >> 1
        mx = []
        if u >= 2:
            w_ = u - 2; s = SB[w_ % 3]; m = vM[w_ & 1]
            for p in range(8):
                mx.append(Ins(f'v_max3_f32 v{m}, v{s + 2 * p}, v{s + 2 * p + 1}, v{m}') if (w_ >= 2 or p) else Ins(f'v_max_f32 v{m}, v{s}, v{s + 1}'))
        if u < 18:
            q = qk(u)
            g.add(q[0])
            if (u & 1) == 0: g.add(k_reads(t + 1) if t < 8 else [])
            g.add(mx[:4]); g.add(q[1]); g.add(mx[4:])
        else:
            if u == 18: g.add(k_reads(0))
            g.add(mx)
        if u == 6: g.add(flag_store(WS_F3, 's3', 'hb'))
    for hd in range(2):
        m, t0, t1 = vM[hd], vT[2 * hd], vT[2 * hd + 1]
        e(f'v_mov_b32 v{t0}, v{m}')
        e(f'v_permlane32_swap_b32 v{m}, v{t0}')
        e(f'v_max_f32 v{m}, v{m}, v{t0}')
        e(f'v_xor_b32 v{m}, 0x80000000, v{m}')
        e(f'v_and_b32 v{t0}, s{sMask}, v{m}')
        e(f'v_sub_f32 v{t1}, v{m}, v{t0}')
        e(f'v_or_b32 v{t0}, 0x3f80, v{t0}')
        e(f'v_cvt_pk_bf16_f32 v{t1}, v{t1}, 0')
        e(f'v_cndmask_b32 v{QF2[hd]}, v{QF2[hd]}, v{t0}, {hi}')
        e(f'v_cndmask_b32 v{QF2[hd] + 1}, v{QF2[hd] + 1}, v{t1}, {hi}')
    g.add(g.stamp('att_max'))

    vH = [4, 5, 16, 17]
    vF = 13
    e(f'v_and_b32 v{vT[0]}, 15, v{vL}')
    e(f'v_lshrrev_b32 v{vT[1]}, 4, v{vL}')
    e(f'v_lshlrev_b32 v{vT[0]}, 4, v{vT[0]}')
    e(f'v_lshl_add_u32 v{vT[0]}, v{vT[1]}, 10, v{vT[0]}')
    e(f's_lshl_b32 s{sT0}, s{sW}, 8')
    e(f'v_add_u32 v{vH[0]}, s{sT0}, v{vT[0]}')
    for la in range(1, 4): e(f'v_xor_b32 v{vH[la]}, {la << 8}, v{vH[0]}')
    e(f's_lshl_b32 s{sT0}, s{sI}, 2'); e(f's_add_u32 s{sT0}, s{sT0}, s{sW}'); e(f's_lshl_b32 s{sT0}, s{sT0}, 1')
    e(f's_add_u32 s{sT0}, s{sT0}, s8'); e(f's_lshl_b32 s{sT0}, s{sT0}, 7')
    e(f'v_and_b32 v{vT[0]}, 7, v{vL}')
    e(f'v_lshl_add_u32 v{vF}, v{vT[0]}, 2, s{sT0}')
    e(f's_mov_b32 s12, {WS_F2}'); e(f's_mov_b32 s13, {WS_F3}'); e(f's_mov_b32 s14, {WS_F4}')
    def ld_flag(k): return f'buffer_load_dword v{vPl[0]}, v{vF}, {srd(S_WS)}, s{12 + k} offen sc1'
    def chk_flag(k): return g.poll_check([ld_flag(k)], [f'v_cmp_ne_u32 vcc, 1, v{vPl[0]}'])
    def act_loads(sbase, ks, base, c='v'):
        return [Ins(f's_add_u32 s{sPf}, s{sbase}, {ks * 4096}')] + \
               [Ins(f'buffer_load_dwordx4 {vr(c, base + 4 * la, 4)}, v{vH[la]}, {srd(S_WS)}, s{sPf} offen sc1') for la in range(4)]

    HB = [236, 116]
    side = {u: [] for u in range(20)}
    side[0] = [Ins(ld_flag(0))]
    side[4] = act_loads(sHb, KS_ORDER[0], HB[0])
    side[5] = act_loads(sHb, KS_ORDER[1], HB[1])
    side[14] = [Ins(ld_flag(1))]
    g.add(qk(0)); g.add(k_reads(1)); g.add(v_reads(0))
    for u in range(18):
        t = u >> 1
        s = SB[u % 3]; p = PB[u & 1]
        ex = [Ins(f'v_exp_f32 v{s + r}, v{s + r}') for r in range(16)]
        cv = [Ins(f'v_cvt_pk_bf16_f32 v{p + r}, v{s + 2 * r}, v{s + 2 * r + 1}') for r in range(8)]
        q = qk(u + 1) if u + 1 < 18 else [None, None]
        pvp = pv(u - 1) if u >= 1 else [None, None]
        if q[0]: g.add(q[0])
        g.add(side[u])
        if u == 3: g.add(chk_flag(0))
        g.add(ex[0:4])
        if q[1]: g.add(q[1])
        if (u & 1) == 0 and 1 <= t < 8: g.add(k_reads(t + 1))
        g.add(ex[4:8])
        if pvp[0]: g.add(pvp[0])
        g.add(ex[8:12]); g.add(cv[0:2])
        if pvp[1]: g.add(pvp[1])
        if u + 1 < 18: g.add(v_reads(u + 1))
        g.add(cv[2:4]); g.add(ex[12:16]); g.add(cv[4:8])
    g.add(pv(17))
    g.add(chk_flag(1))
    FA = 32; SA = 164
    HR = [236, 116, 164, 180, 196, 212]
    for p in range(2, 6): g.add(act_loads(sHb, KS_ORDER[p], HR[p]))
    OP = 112
    for hd in range(2):
        o = OA[hd]
        e(f'v_rcp_f32 v{vT[hd]}, v{o + 13}')
    for hd in range(2):
        o = OA[hd]
        for r in range(12): e(f'v_mul_f32 v{o + r}, v{o + r}, v{vT[hd]}')
        for r in range(4): e(f'v_cvt_pk_bf16_f32 v{o + r}, v{o + 2 * r}, v{o + 2 * r + 1}')
        for r in range(2): e(f'v_cvt_pk_bf16_f32 v{OP + 2 * hd + r}, v{o + 8 + 2 * r}, v{o + 9 + 2 * r}')
        e(f'buffer_store_dwordx4 {vr("v", o, 4)}, v{vHs}, {srd(S_WS)}, s6 offen offset:{3072 * hd} sc1', tag='ost')
    e('s_mov_b32 exec_hi, 0')
    e(f'buffer_store_dwordx4 {vr("v", OP, 4)}, v{vHs}, {srd(S_WS)}, s6 offen offset:2048 sc1', tag='ost')
    e('s_mov_b32 exec_hi, -1')
    g.add(g.stamp('att_end'))
    if opt.get('stop') == 'att':
        g.add(WaitAll())
        return finish(g, opt)

    def mm(acc, wb, hb, first, wc='a', hc='v'):
        r = []
        for nt in range(5):
            for la in range(4):
                a = vr('v', acc + 16 * nt + 4 * la, 4)
                r.append(Ins(f'v_mfma_f32_16x16x32_bf16 {a}, {vr(wc, wb + 4 * nt, 4)}, {vr(hc, hb + 4 * la, 4)}, {0 if first else a}'))
        return r
    def weave(ms, side_, start=0):
        side_ = list(side_)
        for k, m in enumerate(ms):
            g.add(m)
            if k >= start and side_:
                g.add(side_.pop(0))
                while side_ and isinstance(side_[0], Ins) and side_[0].kind in ('vld',) and isinstance(g.it[-1], Ins) and g.it[-1].kind == 'salu':
                    g.add(side_.pop(0))
        g.add(side_)
    WO_A = [0, 20, 40, 124, 144]
    OB_A = [164, 180, 196, 212, 228]
    XR = 244
    vXo = 6
    for p in range(12):
        sd = []
        if p >= 1 and p + 5 < 12: sd += act_loads(sHb, KS_ORDER[p + 5], HR[(p + 5) % 6])
        if 1 <= p <= 5: sd += w_loads('s10', p - 1, WO_A[p - 1])
        if p == opt.get('of_step', 3): sd += flag_store(WS_F4, 's3', 'ost')
        if p == 7:
            sd += [Ins(f's_lshl_b32 s{sT0}, s11, 2'), Ins(f's_add_u32 s{sT0}, s{sT0}, s{sW}'), Ins(f's_mul_i32 s{sT0}, s{sT0}, {16 * 1280}'),
                   Ins(f's_mul_i32 s{sT1}, s7, 160'), Ins(f's_add_u32 s{sT0}, s{sT0}, s{sT1}'),
                   Ins(f'v_and_b32 v{vT[0]}, 15, v{vL}'), Ins(f'v_lshrrev_b32 v{vT[1]}, 4, v{vL}'), Ins(f'v_mul_u32_u24 v{vT[0]}, 1280, v{vT[0]}'),
                   Ins(f'v_lshl_add_u32 v{vT[0]}, v{vT[1]}, 3, v{vT[0]}'), Ins(f'v_add_u32 v{vXo}, s{sT0}, v{vT[0]}')]
        if p == 8:
            sd += [Ins(f'buffer_load_dwordx2 {vr("v", XR + 2 * nt, 2)}, v{vXo}, {srd(S_X)}, 0 offen offset:{32 * nt}') for nt in range(5)]
        if p == opt.get('op_step', 9): sd += [Ins(ld_flag(2))]
        weave(mm(FA, WD_A[p], HR[p % 6], p == 0), sd)
    g.add(chk_flag(2))
    for p in range(5): g.add(act_loads(sOb, p, OB_A[p], 'a'))
    g.add(g.stamp('down_end'))
    vRw = [8, 9, 10]; vRr = 11
    for la in range(1, 4):
        e(f's_xor_b32 s{sT0}, s{sW}, {la}'); e(f's_mul_i32 s{sT0}, s{sT0}, 15360'); e(f's_add_u32 s{sT0}, s{sT0}, {(la - 1) * 5120}')
        e(f'v_add_u32 v{vRw[la - 1]}, s{sT0}, v{vW0}')
    e(f's_mul_i32 s{sT0}, s{sW}, 15360')
    e(f'v_add_u32 v{vRr}, s{sT0}, v{vW0}')
    RED0, RED1 = SLOT, 0
    def red_w(acc, base):
        return [Ins(f'ds_write_b128 v{vRw[la - 1]}, {vr("v", acc + 16 * nt + 4 * la, 4)} offset:{base + 1024 * nt}', tag='red') for la in range(1, 4) for nt in range(5)]
    def red_r(acc, base):
        return [Ins(f'ds_read_b128 {vr("v", acc + 16 * nt + 4 * la, 4)}, v{vRr} offset:{base + 5120 * (la - 1) + 1024 * nt}') for nt in range(5) for la in range(1, 4)]
    def red_add(acc):
        r = []
        for nt in range(5):
            for k in range(4):
                a = acc + 16 * nt + k
                r += [Ins(f'v_add_f32 v{a}, v{a}, v{a + 4}'), Ins(f'v_add_f32 v{a + 8}, v{a + 8}, v{a + 12}'), Ins(f'v_add_f32 v{a}, v{a}, v{a + 8}')]
        return r
    g.add(red_w(FA, RED0))
    g.add(WaitTag('red')); e('s_barrier')
    g.add(red_r(FA, RED0))
    fin = red_add(FA)
    for nt in range(5):
        for k in range(4):
            a = FA + 16 * nt + k
            fin += [Ins(f'v_mul_f32 v{a + 4}, {hex(f2u(-LOG2E))}, v{a}')]
        for k in range(4): a = FA + 16 * nt + k; fin += [Ins(f'v_exp_f32 v{a + 4}, v{a + 4}')]
        for k in range(4): a = FA + 16 * nt + k; fin += [Ins(f'v_add_f32 v{a + 4}, 1.0, v{a + 4}')]
        for k in range(4): a = FA + 16 * nt + k; fin += [Ins(f'v_rcp_f32 v{a + 4}, v{a + 4}')]
        for k in range(4): a = FA + 16 * nt + k; fin += [Ins(f'v_mul_f32 v{a}, v{a}, v{a + 4}')]
    g.add(fin)
    for p in range(5):
        g.add(mm(SA, WO_A[p], OB_A[p], p == 0, 'a', 'a'))
    for r in vRw + [vRr]: e(f'v_add_u32 v{r}, {6 * SLOT}, v{r}')
    g.add(red_w(SA, RED1))
    g.add(WaitTag('red')); e('s_barrier')
    g.add(red_r(SA, RED1))
    g.add(red_add(SA))
    for nt in range(5):
        s = SA + 16 * nt; f = FA + 16 * nt; x = XR + 2 * nt
        for k in range(2):
            e(f'v_lshlrev_b32 v{s + 4 + 2 * k}, 16, v{x + k}')
            e(f'v_and_b32 v{s + 5 + 2 * k}, s{sMask}, v{x + k}')
        for k in range(4): e(f'v_fma_f32 v{s + k}, v{s + k}, v{f + k}, v{s + 4 + k}')
        for k in range(2): e(f'v_cvt_pk_bf16_f32 v{s + 8 + k}, v{s + 2 * k}, v{s + 2 * k + 1}')
        e(f'buffer_store_dwordx2 {vr("v", s + 8, 2)}, v{vXo}, {srd(S_OUT)}, 0 offen offset:{32 * nt}')
    return finish(g, opt)


def finish(g, opt):
    e = g.e
    if opt.get('prof'):
        g.add(WaitAll())
        e('s_memtime s[12:13]')
        e('s_memrealtime s[14:15]')
        g.add(WaitAll())
        e('v_mov_b32 v20, 0')
        for k in range(g.nstamp): e(f'v_writelane_b32 v20, s{sStamp + 2 * k}, {k}')
        e(f'v_writelane_b32 v20, s12, {g.nstamp}')
        e(f'v_writelane_b32 v20, s14, 15')
        e(f's_lshl_b32 s{sT0}, s{sCU}, 10')
        e(f's_add_u32 s{sT0}, s{sT0}, {WS_STAMP}')
        e('v_lshlrev_b32 v21, 2, v0')
        e(f'buffer_store_dword v20, v21, {srd(S_WS)}, s{sT0} offen')
        opt['stamps'].append('end')
    if opt.get('dly'):
        g.add(WaitAll())
        g.add(g.stamp('end'))
        e('s_memrealtime s[12:13]')
        g.add(WaitAll())
        e(f's_sub_u32 s14, s{sStamp + 2}, s{sStamp}')
        e('s_min_u32 s14, s14, 20000')
        g.add(Block(['L_dly:', '    s_memrealtime s[16:17]', '    s_waitcnt lgkmcnt(0)', '    s_sub_u32 s16, s16, s12', '    s_cmp_lt_u32 s16, s14', '    s_cbranch_scc1 L_dly']))
    g.add(Label('L_end'))
    e('s_endpgm')
    items = insert_waits(g.it)
    rep = []
    items = insert_nops(items, rep)
    if opt.get('verbose'):
        for x in rep: print('nop', x, file=sys.stderr)
    print('instructions', sum(isinstance(x, Ins) for x in items), 'nop states', sum(x[0] for x in rep), file=sys.stderr)
    head = open('recurrent_scan__sliding_block__swiglu_ffn__prompt.s.ref').read().split('; Override launch')[0]
    s = head + '; @launch grid=(256,1,1) block=(256,1,1) lds=163840\n'
    s += f'.amdgcn_target "amdgcn-amd-amdhsa--gfx950"\n.text\n.globl {KNAME}\n.p2align 8\n.type {KNAME},@function\n{KNAME}:\n'
    s += render(items)
    s += '\n'.join(g.tail) + '\n'
    s += f'''.section .rodata,"a"
.p2align 6
.amdhsa_kernel {KNAME}
  .amdhsa_next_free_vgpr 512
  .amdhsa_next_free_sgpr 102
  .amdhsa_accum_offset 256
  .amdhsa_group_segment_fixed_size 0
  .amdhsa_kernarg_size 80
  .amdhsa_user_sgpr_count 2
  .amdhsa_user_sgpr_kernarg_segment_ptr 1
  .amdhsa_system_sgpr_workgroup_id_x 1
.end_amdhsa_kernel
'''
    return s


if __name__ == '__main__':
    opt = {}
    outp = sys.argv[1]
    for a in sys.argv[2:]:
        k, _, v = a.partition('=')
        opt[k] = int(v) if v.lstrip('-').isdigit() else (v or 1)
    s = build(opt)
    open(outp, 'w').write(s)
    if opt.get('prof'):
        open(outp + '.stamps', 'w').write(' '.join(opt['stamps']))
```
